```python
import torch

def _softmax(x, axis=-1):
    return torch.softmax(x, dim=axis)
def _gelu(x):
    return torch.nn.functional.gelu(x, approximate="tanh")
def _silu(x):
    return torch.nn.functional.silu(x)
def _sigmoid(x):
    return torch.sigmoid(x)
def _layernorm(x, axis=-1, eps=1e-5):
    m = x.mean(dim=axis, keepdim=True)
    v = x.var(dim=axis, keepdim=True, unbiased=False)
    return (x - m) / torch.sqrt(v + eps)
def _scatter_add(tgt, idx, src, axis=0):
    return tgt.clone().index_add_(axis, idx, src)
def _segment_sum(src, seg, n):
    out = torch.zeros((n,) + src.shape[1:], dtype=src.dtype)
    return out.index_add_(0, seg, src)
def _pad(x, pw):
    flat = tuple(v for pair in reversed(pw) for v in pair)
    return torch.nn.functional.pad(x, flat)

kernel_name = 'sequential_preLN__mha_block__moe_arch_mod__prompt'

def setup_inputs():

    _w = (lambda a: (lambda t: t.to(torch.bfloat16) if t.is_floating_point() else t)(torch.as_tensor(a)))
    def _A_setup():
        B, S, D, H = 1, 2048, 640, 32
        return {
            "x": _w((lambda *s: torch.randn(*s, dtype=torch.bfloat16) * 0.05)(B, S, D)),
            "wqkv": _w((lambda *s: torch.randn(*s, dtype=torch.bfloat16) * 0.05)(D, 3 * D)),
            "wo": _w((lambda *s: torch.randn(*s, dtype=torch.bfloat16) * 0.05)(D, D)),
        }
    _A_in = _A_setup()

    def _B_setup():
        B, S, D, F, C = 1, 2048, 640, 1536, 2
        return {
            "x": _w((lambda *s: torch.randn(*s, dtype=torch.bfloat16) * 0.05)(B, S, D)),
            "w_r": _w((lambda *s: torch.randn(*s, dtype=torch.bfloat16) * 0.05)(D)),
            "w_gate": _w((lambda *s: torch.randn(*s, dtype=torch.bfloat16) * 0.05)(D, F)),
            "w_up": _w((lambda *s: torch.randn(*s, dtype=torch.bfloat16) * 0.05)(D, F)),
            "w_down": _w((lambda *s: torch.randn(*s, dtype=torch.bfloat16) * 0.05)(F, D)),
        }
    _B_in = _B_setup()

    return {
        "A_x": _A_in["x"],
        "A_wqkv": _A_in["wqkv"],
        "A_wo": _A_in["wo"],
        "B_x": _B_in["x"],
        "B_w_r": _B_in["w_r"],
        "B_w_gate": _B_in["w_gate"],
        "B_w_up": _B_in["w_up"],
        "B_w_down": _B_in["w_down"],
    }

def reference(A_x, A_wqkv, A_wo, B_x, B_w_r, B_w_gate, B_w_up, B_w_down):
    def _A_ref(x, wqkv, wo):
        B, S, D = x.shape
        H = 32
        Dh = D // H
        qkv = (lambda x, *d: x.permute(*d))((x @ wqkv).reshape(B, S, 3, H, Dh), 2, 0, 3, 1, 4)
        q, k, v = qkv[0], qkv[1], qkv[2]
        scores = torch.einsum("bhqd,bhkd->bhqk", q, k) * (Dh ** -0.5)
        p = _softmax(scores, axis=-1)
        o = torch.einsum("bhqk,bhkd->bhqd", p, v)
        return (lambda x, *d: x.permute(*d))(o, 0, 2, 1, 3).reshape(B, S, D) @ wo

    def _B_ref(x, w_r, w_gate, w_up, w_down):
        B, S, D = x.shape
        C = 2
        r = x @ w_r
        idx = torch.argsort(-r, axis=-1)[:, :C]
        idx_e = (lambda x, n, axis: torch.repeat_interleave(x, n, dim=axis))(idx.reshape(B, C, 1), D, axis=2)
        x_sel = (lambda x, i, axis: torch.take_along_dim(x, i, dim=axis))(x, idx_e, axis=1)
        g = _silu(x_sel @ w_gate)
        u = x_sel @ w_up
        y = (g * u) @ w_down
        r_sel = _sigmoid((lambda x, i, axis: torch.take_along_dim(x, i, dim=axis))(r, idx, axis=1))
        y = y * r_sel.reshape(B, C, 1)
        b_off = (torch.arange(B) * S).reshape(B, 1)
        flat_idx = (idx + b_off).reshape(B * C)
        zero = (x * 0.0).reshape(B * S, D)
        upd = _scatter_add(zero, flat_idx, y.reshape(B * C, D), axis=0)
        return x + upd.reshape(B, S, D)

    x = A_x
    h = x + _A_ref(_layernorm(x, axis=-1), A_wqkv, A_wo)
    h2 = h + _B_ref(_layernorm(h, axis=-1), B_w_r, B_w_gate, B_w_up, B_w_down)
    return h2
```

```python
import re

TRANS = ("v_exp_", "v_log_", "v_rcp_", "v_rsq_", "v_sqrt_", "v_sin_", "v_cos_")

def mfma_passes(op):
    if "32x32x4_2b" in op: return 16
    if "4x4x4" in op: return 2
    if "16x16x4_4b" in op: return 8
    if "32x32" in op: return 8
    if "16x16" in op: return 4
    raise ValueError(op)

_reg_re = re.compile(r"^(-|abs\()?([vsa])(\d+)\)?$|^(-|abs\()?([vsa])\[(\d+):(\d+)\]\)?$")
def regs_of(tok):
    tok = tok.strip()
    if tok in ("vcc", "vcc_lo", "vcc_hi"): return {("s", "vcc")}
    if tok in ("exec", "exec_lo", "exec_hi"): return {("s", "exec")}
    if tok == "m0": return {("s", "m0")}
    m = _reg_re.match(tok)
    if not m: return set()
    if m.group(2):
        return {(m.group(2), int(m.group(3)))}
    return {(m.group(5), i) for i in range(int(m.group(6)), int(m.group(7)) + 1)}

class Ins:
    def __init__(self, text):
        self.text = text
        t = text.split(";")[0].strip()
        self.label = None; self.op = None
        self.w = set(); self.r = set()
        self.kind = "other"
        if not t or t.startswith("."):
            self.kind = "none"; return
        if t.endswith(":"):
            self.label = t[:-1]; self.kind = "label"; return
        parts = t.split(None, 1)
        op = self.op = parts[0]
        rest = parts[1] if len(parts) > 1 else ""
        ops = []; cur = ""; depth = 0
        for ch in rest:
            if ch in "[(": depth += 1
            if ch in "])": depth -= 1
            if ch == "," and depth == 0:
                ops.append(cur.strip()); cur = ""
            else: cur += ch
        if cur.strip(): ops.append(cur.strip())
        mods = ""
        if ops:
            last = ops[-1].split(None, 1)
            ops[-1] = last[0]
            mods = last[1] if len(last) > 1 else ""
        self.ops = ops; self.mods = mods
        R = [regs_of(o) for o in ops]
        self.dpp = ("_dpp" in op) or ("quad_perm" in mods) or ("row_" in mods)
        self.sdwa_dst = ("dst_sel:WORD" in mods or "dst_sel:BYTE" in mods)
        if op.startswith("v_mfma") or op.startswith("v_smfmac"):
            self.kind = "mfma"; self.passes = mfma_passes(op)
            self.w = R[0]
            if op.startswith("v_smfmac"):
                self.C = R[0]; self.AB = R[1] | R[2] | R[3]
            else:
                self.C = R[3]; self.AB = R[1] | R[2]
            self.r = self.C | self.AB
        elif op.startswith("v_"):
            self.kind = "valu"
            self.trans = op.startswith(TRANS)
            self.dot = op.startswith("v_dot")
            if op.startswith("v_nop"):
                pass
            elif op.startswith("v_permlane") and "swap" in op:
                self.w = R[0] | R[1]; self.r = R[0] | R[1]
            elif op.startswith(("v_add_co", "v_sub_co", "v_subrev_co", "v_addc_co", "v_subb_co", "v_mad_u64", "v_div_scale")):
                self.w = R[0] | R[1]; self.r = set().union(*R[2:])
            else:
                self.w = R[0]; self.r = set().union(*R[1:]) if len(R) > 1 else set()
                if op.startswith(("v_fmac", "v_dot2c", "v_writelane", "v_pk_fmac")) or self.dpp or "UNUSED_PRESERVE" in mods:
                    self.r |= R[0]
                if op.startswith("v_cmpx"): self.w |= {("s", "exec")}
        elif op.startswith(("buffer_", "global_", "flat_")):
            self.kind = "vmem"
            self.lds = (" lds" in (" " + mods)) or ("_lds_" in op)
            isload = "_load" in op
            isatomic = "_atomic" in op
            self.wide_store = ("_store" in op) and ("x3" in op or "x4" in op)
            if op in ("buffer_wbl2", "buffer_inv"):
                pass
            elif self.lds:
                self.r = set().union(*R) | {("s", "m0")}
            elif isload:
                self.w = R[0]; self.r = set().union(*R[1:])
            elif isatomic and "sc0" in mods:
                if op.startswith("buffer_"):
                    self.w = R[0]; self.r = set().union(*R)
                else:
                    self.w = R[0]; self.r = set().union(*R[1:])
            else:
                self.r = set().union(*R)
                self.data = R[0] if op.startswith("buffer_") else R[1]
        elif op.startswith("ds_"):
            self.kind = "ds"
            if op.startswith(("ds_read", "ds_bpermute", "ds_permute", "ds_swizzle")) or "_rtn" in op:
                self.w = R[0]; self.r = set().union(*R[1:])
            else:
                self.r = set().union(*R)
        elif op.startswith("s_"):
            self.kind = "salu"
            if op.startswith(("s_cmp", "s_waitcnt", "s_barrier", "s_nop", "s_branch", "s_cbranch", "s_endpgm", "s_sleep", "s_setprio", "s_bitcmp")):
                self.r = set().union(*R) if R else set()
            else:
                self.w = R[0] if R else set(); self.r = set().union(*R[1:]) if len(R) > 1 else set()
                if "saveexec" in op: self.w |= {("s", "exec")}
    def states(self):
        if self.kind in ("none", "label"): return 0
        if self.op == "s_nop": return int(self.ops[0], 0) + 1
        return 1

def vonly(s): return {x for x in s if x[0] in "va"}
def sonly(s): return {x for x in s if x[0] == "s"}

def need(p, c):
    n = 0
    if p.kind == "valu":
        vw = vonly(p.w); sw = sonly(p.w)
        if c.kind == "mfma":
            if vw & c.r: n = max(n, 3 if p.dot else 2)
            if ("s", "exec") in sw: n = max(n, 4)
        if c.kind == "valu":
            if p.trans and not c.trans and (vw & c.r): n = max(n, 1)
            if c.dpp and (vw & c.r): n = max(n, 2)
            if c.dpp and ("s", "exec") in sw: n = max(n, 5)
            if c.op.startswith("v_permlane") and (vw & c.r): n = max(n, 2)
            if c.op.startswith(("v_readlane", "v_readfirstlane")) and (vw & c.r): n = max(n, 1)
            if sw & c.r:
                n = max(n, 4 if c.op.startswith(("v_readlane", "v_writelane")) else 2)
            if ("s", "vcc") in sw and c.op.startswith("v_div_fmas"): n = max(n, 4)
            if p.sdwa_dst and (vw & (c.r | c.w)): n = max(n, 1)
            if p.dot and (vw & (c.r | c.w)) and c.op != p.op: n = max(n, 3)
        if c.kind == "vmem" and (sw & c.r): n = max(n, 5)
        if c.kind in ("vmem", "ds") and p.dot and (vw & c.r): n = max(n, 3)
        if c.kind in ("vmem", "ds") and p.trans and (vw & c.r): n = max(n, 1)
    if p.kind == "mfma":
        P = p.passes
        full = {2: 5, 4: 8, 8: 12, 16: 20}[P]
        if c.kind == "mfma":
            if p.w & c.AB: n = max(n, full)
            if p.w & c.C:
                if p.w == c.C and c.passes == P: n = max(n, 2 if P == 2 else 0)
                else: n = max(n, P + 2)
            elif p.w & c.w:
                n = max(n, P + 2) if (p.w != c.w or c.passes != P) else max(n, 0)
        if c.kind in ("valu", "vmem", "ds"):
            if p.w & (c.r | c.w): n = max(n, full)
        if c.kind == "valu" and (p.C & c.w): n = max(n, P - 1)
    if p.kind == "salu" and ("s", "m0") in p.w:
        if c.kind == "vmem" and c.lds: n = max(n, 1)
    if p.kind == "vmem" and p.wide_store:
        if p.data & c.w: n = max(n, 2 if c.kind == "valu" else 1)
    if p.kind == "ds" and p.op.startswith(("ds_write_b128", "ds_write_b96")):
        pass
    return n

class Asm:
    def __init__(self):
        self.lines = []
    def __call__(self, s):
        for ln in s.split("\n"):
            ln = ln.rstrip()
            if ln.strip(): self.lines.append("    " + ln.strip() if not ln.strip().endswith(":") else ln.strip())
    def text(self): return "\n".join(self.lines) + "\n"

def fix_hazards(lines, verbose=True, name=""):
    inserted = []
    for _pass in range(200):
        ins = [Ins(l) for l in lines]
        labels = {x.label: i for i, x in enumerate(ins) if x.label}
        preds = {i: [] for i in range(len(ins))}
        for i, x in enumerate(ins):
            fall = True
            if x.kind == "salu":
                if x.op == "s_branch":
                    fall = False; preds[labels[x.ops[0]]].append(i)
                elif x.op.startswith("s_cbranch"):
                    preds[labels[x.ops[0]]].append(i)
                elif x.op == "s_endpgm": fall = False
            if fall and i + 1 < len(ins): preds[i + 1].append(i)
        found = None
        for i, c in enumerate(ins):
            if c.kind in ("none", "label"): continue
            worst = 0; wp = None
            stack = [(p, 0) for p in preds[i]]
            seen = {}
            while stack:
                j, d = stack.pop()
                if d >= 20: continue
                if j in seen and seen[j] <= d: continue
                seen[j] = d
                p = ins[j]
                if p.kind not in ("none", "label"):
                    n = need(p, c)
                    if n - d > worst: worst = n - d; wp = p
                nd = d + p.states()
                for q in preds[j]: stack.append((q, nd))
            if worst > 0:
                found = (i, worst, wp, c); break
        if not found: break
        i, worst, wp, c = found
        inserted.append((worst, wp.text.strip(), c.text.strip()))
        k = worst
        new = []
        while k > 0:
            t = min(k, 16); new.append(f"    s_nop {t-1}"); k -= t
        lines = lines[:i] + new + lines[i:]
    if verbose:
        for w, a, b in inserted: print(f"[{name}] nop {w}: {a}  ->  {b}")
    return lines
```

```python
import sys, struct
sys.path.insert(0, "gen")
from asmlib import Asm, fix_hazards

NAME = "sequential_preLN__mha_block__moe_arch_mod__prompt"
QB = 0x000000; KB = 0x280000; VB = 0x500000; OB = 0x780000; HB = 0xA00000
ST = 0xC80000; ACT = 0xC90000; SEL = 0xC94000; TS = 0xD00000; WS_SIZE = 0xE00000
STAMP = "--stamp" in sys.argv

def f2u(x): return struct.unpack("<I", struct.pack("<f", x))[0]
def hx(x): return hex(f2u(x))

def srd(a, d, b, size):
    a(f"""s_mov_b32 s{d}, s{b}
    s_and_b32 s{d+1}, s{b+1}, 0xffff
    s_mov_b32 s{d+2}, {size}
    s_mov_b32 s{d+3}, 0x20000""")

def stamp_begin(a):
    if STAMP: a("s_memrealtime s[90:91]")
def stamp_end(a, kid, srdws, vt0, vt1):
    if STAMP:
        a(f"""s_memrealtime s[92:93]
        s_waitcnt lgkmcnt(0)
        s_lshl_b32 s94, s2, 3
        s_add_u32 s94, s94, s20
        s_lshl_b32 s94, s94, 3
        s_add_u32 s94, s94, {TS + kid*32768}
        v_mov_b32 v{vt0}, s90
        v_mov_b32 v{vt1}, s92
        s_mov_b64 exec, 1
        buffer_store_dwordx2 v[{vt0}:{vt1}], off, s[{srdws}:{srdws+3}], s94
        s_waitcnt vmcnt(0)""")

def k1():
    a = Asm()
    SLOT = 32768; WOFF = 16384; STAB = 131072
    stamp_begin(a)
    a(f"""s_cmp_ge_u32 s2, 256
    s_cbranch_scc1 K1_exit
    s_load_dwordx4 s[4:7], s[0:1], 0
    s_load_dwordx2 s[24:25], s[0:1], 80
    v_lshrrev_b32 v1, 6, v0
    v_and_b32 v0, 63, v0
    s_and_b32 s23, s2, 7
    v_readfirstlane_b32 s20, v1
    s_lshr_b32 s26, s2, 3
    s_lshr_b32 s21, s23, 1
    s_lshl_b32 s21, s21, 2
    s_and_b32 s27, s26, 3
    s_add_u32 s21, s21, s27          ; rb
    s_and_b32 s22, s23, 1
    s_lshl_b32 s22, s22, 3
    s_lshr_b32 s27, s26, 2
    s_add_u32 s22, s22, s27          ; cg
    s_waitcnt lgkmcnt(0)""")
    srd(a, 8, 4, 2621440); srd(a, 12, 6, 2457600); srd(a, 16, 24, WS_SIZE)
    a(f"""s_cmp_eq_u32 s22, 15
    s_cbranch_scc1 K1_spare
    s_cmp_lt_u32 s20, 4
    s_cbranch_scc1 K1_consumer""")
    a(f"""s_sub_u32 s26, s20, 4          ; lw
    s_add_u32 s27, s21, s22
    s_cmp_ge_u32 s27, 20
    s_cselect_b32 s28, 20, 0
    s_sub_u32 s27, s27, s28
    s_cmp_ge_u32 s27, 10
    s_cselect_b32 s28, 10, 0
    s_sub_u32 s27, s27, s28            ; kc = (rb+cg)%10
    v_lshrrev_b32 v1, 3, v0            ; r8
    v_and_b32 v2, 7, v0
    v_lshrrev_b32 v3, 1, v1            ; r8>>1
    v_xor_b32 v2, v2, v3
    s_lshl_b32 s28, s21, 7
    s_lshl_b32 s29, s26, 5
    s_add_u32 s28, s28, s29
    v_add_u32 v1, s28, v1              ; row (j=0)
    v_mul_u32_u24 v1, 1280, v1
    v_xor_b32 v3, 4, v2
    v_lshl_add_u32 v10, v2, 4, v1
    v_lshl_add_u32 v11, v3, 4, v1
    v_add_u32 v12, {2*(10240-1024)}, v10
    v_add_u32 v11, {1*(10240-1024)}, v11
    v_add_u32 v13, {2*(10240-1024)}, v11
    v_lshrrev_b32 v1, 4, v0            ; r4
    v_and_b32 v2, 15, v0
    v_lshlrev_b32 v3, 2, v1
    v_xor_b32 v2, v2, v3
    s_lshl_b32 s28, s26, 4
    v_add_u32 v1, s28, v1
    v_mul_u32_u24 v1, 3840, v1
    s_lshl_b32 s28, s22, 8
    v_lshl_add_u32 v1, v2, 4, v1
    v_add_u32 v14, s28, v1
    v_add_u32 v15, {1*(15360-1024)}, v14
    v_add_u32 v16, {2*(15360-1024)}, v14
    v_add_u32 v17, {3*(15360-1024)}, v14
    s_lshl_b32 s30, s26, 12
    s_mov_b32 s31, 0
K1_ld_loop:
    s_cmp_lt_u32 s31, 3
    s_cbranch_scc1 K1_ld_issue
    s_waitcnt vmcnt(16)
    s_barrier
K1_ld_issue:
    s_lshl_b32 s28, s27, 7
    s_mul_i32 s29, s27, {64*3840}
    s_mov_b32 m0, s30
    s_add_u32 s27, s27, 1""")
    for j in range(4):
        a(f"buffer_load_dwordx4 v{10+j}, s[8:11], s28 offen offset:{j*1024} lds")
    a(f"""s_add_u32 m0, s30, {WOFF}
    s_cmp_eq_u32 s27, 10""")
    for j in range(4):
        a(f"buffer_load_dwordx4 v{14+j}, s[12:15], s29 offen offset:{j*1024} lds")
    a(f"""s_cselect_b32 s27, 0, s27
    s_add_u32 s30, s30, {SLOT}
    s_and_b32 s30, s30, {4*SLOT-1}
    s_add_u32 s31, s31, 1
    s_cmp_lt_u32 s31, 10
    s_cbranch_scc1 K1_ld_loop
    s_waitcnt vmcnt(16)
    s_barrier
    s_waitcnt vmcnt(8)
    s_barrier
    s_waitcnt vmcnt(0)
    s_barrier""")
    stamp_end(a, 0, 16, 2, 3)
    a("s_endpgm")
    a(f"""K1_spare:
    s_cmp_ge_u32 s20, 2
    s_cbranch_scc1 K1_exit
    v_lshlrev_b32 v1, 4, v0
    s_lshl_b32 s26, s21, 11
    s_lshl_b32 s27, s20, 10
    s_add_u32 s26, s26, s27
    s_add_u32 s26, s26, {ST}
    v_mov_b32 v4, 0
    v_mov_b32 v5, 0
    v_mov_b32 v6, 0
    v_mov_b32 v7, 0
    buffer_store_dwordx4 v[4:7], v1, s[16:19], s26 offen
K1_exit:
    s_endpgm""")
    a(f"""K1_consumer:
    s_lshr_b32 s26, s20, 1             ; tw
    s_and_b32 s27, s20, 1              ; fw
    v_and_b32 v17, 31, v0              ; n
    v_lshrrev_b32 v18, 5, v0           ; hh
    v_bfe_u32 v19, v0, 1, 3            ; (n>>1)&7
    v_xor_b32 v19, v19, v18
    v_lshlrev_b32 v19, 4, v19
    v_lshl_add_u32 v19, v17, 7, v19
    s_lshl_b32 s28, s20, 12            ; (2tw+fw)*4096
    v_add_u32 v2, s28, v19
    v_xor_b32 v3, 32, v2
    v_xor_b32 v4, 64, v2
    v_xor_b32 v5, 96, v2
    v_xor_b32 v6, 4096, v2
    v_xor_b32 v7, 4096, v3
    v_xor_b32 v8, 4096, v4
    v_xor_b32 v9, 4096, v5
    v_bfe_u32 v19, v0, 2, 2            ; r
    v_bfe_u32 v20, v0, 4, 1            ; mhalf
    v_and_b32 v21, 1, v0               ; c0
    v_bfe_u32 v22, v0, 1, 1            ; c1
    s_cmp_ge_u32 s22, 10
    s_cselect_b64 s[30:31], -1, 0
    v_cndmask_b32 v23, v21, v22, s[30:31]
    v_cndmask_b32 v62, v22, v21, s[30:31]
    v_lshl_add_u32 v23, v20, 1, v23
    s_lshl_b32 s28, s27, 1
    s_add_u32 s28, s28, s26
    v_xor_b32 v63, s28, v19
    v_lshl_add_u32 v23, v63, 2, v23           ; slot
    v_lshlrev_b32 v23, 4, v23
    v_lshl_add_u32 v23, v62, 3, v23
    v_lshl_add_u32 v19, v18, 3, v19           ; 8hh + r
    v_lshl_add_u32 v23, v19, 8, v23
    v_add_u32 v10, {WOFF}, v23
    v_xor_b32 v11, 64, v10
    ; smfmac constants: row=l%16 -> fr=row>>2, par=(row>>1)&1, pp=row&1 ; on if row<8 && (l>>5)==fr && (reg>>1)==par
    v_bfe_u32 v19, v0, 2, 2            ; row>>2 (0..3)
    v_cmp_eq_u32 vcc, v19, v18
    v_mov_b32 v20, 0x3f803f80
    v_cndmask_b32 v20, 0, v20, vcc
    v_cmp_eq_u32 vcc, 0, v22
    v_mov_b32 v16, 0xeeee
    v_mov_b32 v19, 0x4444
    v_cndmask_b32 v12, 0, v20, vcc
    v_cndmask_b32 v14, v20, 0, vcc
    v_cmp_eq_u32 vcc, 0, v21
    v_mov_b32 v13, v12
    v_mov_b32 v15, v14
    v_cndmask_b32 v16, v16, v19, vcc""")
    for i in range(56, 62): a(f"v_mov_b32 v{i}, 0")
    for i in range(64, 128): a(f"v_mov_b32 v{i}, 0")
    def reads(p, ks):
        b = 24 + 16*p
        return [f"ds_read_b128 v[{b}:{b+3}], v{2+ks}",
                f"ds_read_b64_tr_b16 v[{b+4}:{b+5}], v10 offset:{ks*4096}",
                f"ds_read_b64_tr_b16 v[{b+6}:{b+7}], v10 offset:{ks*4096+1024}",
                f"ds_read_b128 v[{b+8}:{b+11}], v{6+ks}",
                f"ds_read_b64_tr_b16 v[{b+12}:{b+13}], v11 offset:{ks*4096}",
                f"ds_read_b64_tr_b16 v[{b+14}:{b+15}], v11 offset:{ks*4096+1024}"]
    a(f"s_mov_b32 s29, 0\ns_mov_b32 s32, {SLOT}\ns_mov_b32 s33, 0xffff0000\ns_barrier")
    for r in reads(0, 0): a(r)
    a("s_cmp_ge_u32 s22, 10\ns_cbranch_scc1 K1_loopV")
    for vt in (0, 1):
        L = "K1_loopV" if vt else "K1_loopQ"
        a(f".p2align 3\n{L}:")
        for ks in range(4):
            p = ks & 1; b = 24 + 16*p
            X = [f"v[{b}:{b+3}]", f"v[{b+8}:{b+11}]"]; W = [f"v[{b+4}:{b+7}]", f"v[{b+12}:{b+15}]"]
            a("s_waitcnt lgkmcnt(0)")
            upd = []
            if ks == 3:
                a(f"""s_add_u32 s29, s29, 1
                s_and_b32 s28, s29, 3
                s_cselect_b32 s28, s32, {(-3*SLOT) & 0xffffffff}
                s_barrier
                v_add_u32 v2, s28, v2
                v_add_u32 v10, s28, v10
                v_add_u32 v6, s28, v6
                v_add_u32 v11, s28, v11""")
                upd = [f"v_add_u32 v{i}, s28, v{i}" for i in (3, 7, 4, 8, 5, 9)]
            rd = reads(1 - p, (ks + 1) & 3)
            sq = []
            for i in range(4):
                sq += [f"v_lshlrev_b32 v62, 16, v{b+i}", f"v_and_b32 v63, s33, v{b+i}", "v_fmac_f32 v60, v62, v62", "v_fmac_f32 v61, v63, v63"]
            mf = []
            for (aa, bb) in ((0, 0), (0, 1), (1, 1), (1, 0)):
                acc = 64 + 16*(2*aa + bb)
                o = (X[aa], W[bb]) if vt else (W[bb], X[aa])
                mf.append(f"v_mfma_f32_32x32x16_bf16 v[{acc}:{acc+15}], {o[0]}, {o[1]}, v[{acc}:{acc+15}]")
            a(mf[0]); a(rd[0]); a(rd[1]); a(rd[2])
            for s in sq[0:4]: a(s)
            a(mf[1]); a(rd[3]); a(rd[4]); a(rd[5])
            for s in sq[4:8]: a(s)
            a(mf[2])
            for s in sq[8:12] + upd[0:2]: a(s)
            a(mf[3])
            for s in sq[12:16] + upd[2:4]: a(s)
            a(f"v_smfmac_f32_16x16x64_bf16 v[56:59], v[12:15], v[{b}:{b+7}], v16")
            for s in upd[4:6]: a(s)
        a(f"s_cmp_lt_u32 s29, 10\ns_cbranch_scc1 {L}")
        if not vt: a("s_branch K1_epi")
    qscale = 1.4426950408889634 * (20 ** -0.5)
    a(f"""K1_epi:
    v_add_f32 v60, v60, v61
    v_mov_b32 v61, v60
    s_cmp_lt_u32 s22, 5
    s_cselect_b32 s34, {hx(qscale)}, 1.0
    v_permlane32_swap_b32 v60, v61
    v_add_f32 v60, v60, v61            ; sumsq (all lanes: token l%32)
    v_add_f32 v56, v56, v57
    v_add_f32 v58, v58, v59
    v_permlane16_swap_b32 v56, v58
    v_mul_f32 v56, {hx(1.0/640)}, v56  ; mean
    v_mul_f32 v60, {hx(1.0/640)}, v60
    v_fma_f32 v60, -v56, v56, v60      ; var
    v_max_f32 v60, 0, v60
    v_add_f32 v60, {hx(1e-5)}, v60
    v_rsq_f32 v60, v60
    v_mul_f32 v60, s34, v60            ; A
    v_mul_f32 v61, -v56, v60
    s_lshl_b32 s28, s20, 7
    s_add_u32 s28, s28, {STAB}
    v_lshl_add_u32 v62, v17, 2, s28
    s_lshl_b32 s30, s27, 1
    s_add_u32 s30, s30, s26
    s_lshl_b32 s31, s30, 7
    s_add_u32 s31, s31, {STAB}
    v_lshl_add_u32 v63, v17, 2, s31
    s_waitcnt lgkmcnt(0)
    s_mov_b32 exec_hi, 0
    ds_write_b32 v62, v60
    ds_write_b32 v62, v61 offset:512
    ds_write_b32 v63, v58 offset:1024
    s_mov_b64 exec, -1
    ; T values
    s_lshl_b32 s35, s21, 2
    s_add_u32 s35, s35, s20            ; T for a'=0
    s_xor_b32 s36, s35, 1              ; T for a'=1
    s_cmp_ge_u32 s22, 10
    s_cbranch_scc1 K1_epiV""")
    a(f"""s_mul_i32 s35, s35, 2560
    s_mul_i32 s36, s36, 2560
    s_cmp_ge_u32 s22, 5
    s_cselect_b32 s37, 5, 0
    s_cselect_b32 s38, {KB}, {QB}
    s_cselect_b64 s[40:41], -1, 0
    s_sub_u32 s37, s22, s37            ; cgl
    s_add_u32 s35, s35, s38
    s_add_u32 s36, s36, s38
    ; m = K ? swap23(n) : n
    v_and_b32 v19, 0x13, v17
    v_bfe_u32 v20, v17, 2, 1
    v_bfe_u32 v21, v17, 3, 1
    v_lshl_add_u32 v19, v20, 3, v19
    v_lshl_add_u32 v19, v21, 2, v19
    v_cndmask_b32 v19, v17, v19, s[40:41]
    v_lshlrev_b32 v19, 4, v19          ; m*16
    s_lshl_b32 s37, s37, 4""")
    for bb in range(2):
        for half in range(2):
            d = 2 + 2*bb + half
            a(f"""s_xor_b32 s39, s30, {bb}
            s_lshl_b32 s39, s39, 2
            s_add_u32 s39, s39, s37
            s_add_u32 s39, s39, {2*half}
            v_add_u32 v20, s39, v18            ; U
            v_mul_u32_u24 v21, 205, v20
            v_lshrrev_b32 v21, 10, v21         ; hp = U/5
            v_mul_u32_u24 v22, {163840 - 5*512}, v21
            v_lshl_add_u32 v22, v20, 9, v22
            v_add_u32 v{d}, v22, v19""")
    a(f"""v_xor_b32 v6, 128, v62
    v_lshl_add_u32 v7, v18, 4, s31
    v_xor_b32 v8, 128, v7
    s_waitcnt lgkmcnt(0)
    s_barrier
    ds_read_b32 v10, v62
    ds_read_b32 v12, v62 offset:512
    ds_read_b32 v14, v6
    ds_read_b32 v16, v6 offset:512""")
    for bb in range(2):
        for g in range(4):
            a(f"ds_read_b128 v[{24+16*bb+4*g}:{27+16*bb+4*g}], v{7+bb} offset:{1024+32*g}")
    a("s_waitcnt lgkmcnt(0)")
    for aa in range(2):
        for bb in range(2):
            acc = 64 + 16*(2*aa + bb)
            A = 10 + 4*aa; B = 12 + 4*aa
            for half in range(2):
                for i in range(4):
                    r = 8*half + 2*i
                    a(f"v_pk_mul_f32 v[{acc+r}:{acc+r+1}], v[{acc+r}:{acc+r+1}], v[{A}:{A+1}] op_sel_hi:[1,0]")
                for i in range(4):
                    r = 8*half + 2*i
                    a(f"v_pk_fma_f32 v[{acc+r}:{acc+r+1}], v[{24+16*bb+r}:{25+16*bb+r}], v[{B}:{B+1}], v[{acc+r}:{acc+r+1}] op_sel_hi:[1,0,1]")
                for i in range(4):
                    r = 8*half + 2*i
                    a(f"v_cvt_pk_bf16_f32 v{acc+8*half+i}, v{acc+r}, v{acc+r+1}")
                a(f"buffer_store_dwordx4 v[{acc+8*half}:{acc+8*half+3}], v{2+2*bb+half}, s[16:19], s{35+aa} offen")
    stamp_end(a, 0, 16, 2, 3)
    a("s_endpgm")
    a(f"""K1_epiV:
    s_mul_i32 s35, s35, 1280
    s_mul_i32 s36, s36, 1280
    s_add_u32 s35, s35, {VB}
    s_add_u32 s36, s36, {VB}
    s_sub_u32 s37, s22, 10
    s_lshl_b32 s37, s37, 7
    v_mul_u32_u24 v19, 320, v18""")
    for bb in range(2):
        a(f"""s_xor_b32 s39, s30, {bb}
        s_lshl_b32 s39, s39, 5
        s_add_u32 s39, s39, s37
        v_add_u32 v20, s39, v17            ; col
        v_mul_u32_u24 v21, 3277, v20
        v_lshrrev_b32 v21, 16, v21
        v_mul_u32_u24 v22, {81920 - 320}, v21
        v_lshl_add_u32 v22, v20, 4, v22
        v_add_u32 v{2+bb}, v22, v19""")
    a(f"""v_xor_b32 v6, 128, v63
    v_lshl_add_u32 v7, v18, 4, s28
    v_xor_b32 v8, 128, v7
    s_waitcnt lgkmcnt(0)
    s_barrier
    ds_read_b32 v10, v63 offset:1024
    ds_read_b32 v12, v6 offset:1024""")
    for aa in range(2):
        for g in range(4):
            a(f"ds_read_b128 v[{24+4*g}:{27+4*g}], v{7+aa} offset:{32*g}")
            a(f"ds_read_b128 v[{40+4*g}:{43+4*g}], v{7+aa} offset:{512+32*g}")
        a("s_waitcnt lgkmcnt(0)")
        for bb in range(2):
            acc = 64 + 16*(2*aa + bb)
            C = 10 + 2*bb
            for half in range(2):
                for i in range(4):
                    r = 8*half + 2*i
                    a(f"v_pk_mul_f32 v[{acc+r}:{acc+r+1}], v[{acc+r}:{acc+r+1}], v[{24+r}:{25+r}]")
                for i in range(4):
                    r = 8*half + 2*i
                    a(f"v_pk_fma_f32 v[{acc+r}:{acc+r+1}], v[{40+r}:{41+r}], v[{C}:{C+1}], v[{acc+r}:{acc+r+1}] op_sel_hi:[1,0,1]")
                for i in range(4):
                    r = 8*half + 2*i
                    a(f"v_cvt_pk_bf16_f32 v{acc+8*half+i}, v{acc+r}, v{acc+r+1}")
                a(f"buffer_store_dwordx4 v[{acc+8*half}:{acc+8*half+3}], v{2+bb}, s[16:19], s{35+aa} offen offset:{640*half}")
    stamp_end(a, 0, 16, 2, 3)
    a("s_endpgm")
    return dict(name="k1_kernel", lines=a.lines, vgpr=128, grid=256, block=512, lds=STAB + 2048)

def k2():
    a = Asm()
    SLOT = 22528; NSLOT = 4; VOFF = 12288
    S = [0+16, 32+16]
    O = 80
    QM = 96; QT = 100
    KM = [104, 112]
    KT = [102, 120]
    V = [124, 140]
    AKM, AKT, AV, IDX = 2, 3, 4, 5
    D0 = 6
    stamp_begin(a)
    a(f"""s_cmp_ge_u32 s2, 256
    s_cbranch_scc1 K2_exit
    s_load_dwordx2 s[24:25], s[0:1], 80
    v_lshrrev_b32 v1, 6, v0
    v_and_b32 v0, 63, v0
    s_and_b32 s21, s2, 7
    v_readfirstlane_b32 s20, v1
    s_lshl_b32 s21, s21, 2
    s_bfe_u32 s22, s2, 0x20003
    s_add_u32 s21, s21, s22            ; head
    s_lshr_b32 s22, s2, 5              ; qb
    s_lshr_b32 s23, s21, 1             ; hp
    s_and_b32 s26, s21, 1              ; odd
    s_mul_i32 s27, s23, 163840
    s_lshl_b32 s28, s26, 10
    s_add_u32 s28, s28, s27
    s_add_u32 s28, s28, {KB}
    s_mul_i32 s29, s21, 81920
    s_add_u32 s29, s29, {VB}
    v_lshlrev_b32 v9, 4, v0            ; lane*16""")
    a(f"""s_lshl_b32 s30, s20, 10
    v_add_u32 v10, s30, v9             ; b = 1024*i0 + 16*l
    v_lshrrev_b32 v11, 9, v10
    v_mul_u32_u24 v11, 43, v11
    v_lshrrev_b32 v11, 7, v11          ; tile = b/1536
    v_lshl_add_u32 v{D0}, v11, 10, v10
    v_add_u32 v10, 8192, v10
    v_lshrrev_b32 v11, 9, v10
    v_mul_u32_u24 v11, 43, v11
    v_lshrrev_b32 v11, 7, v11
    v_lshl_add_u32 v11, v11, 10, v10
    v_subrev_u32 v12, {VOFF}, v10
    s_movk_i32 s38, 10240
    s_cmp_lt_u32 s20, 4
    s_cselect_b64 s[32:33], -1, 0
    s_cselect_b32 s35, s28, s29        ; soffset i1
    s_cselect_b32 s38, 20480, s38      ; stride i1
    v_cndmask_b32 v{D0+1}, v12, v11, s[32:33]
    s_add_u32 s31, s20, 16
    s_min_u32 s31, s31, 21
    s_lshl_b32 s31, s31, 10
    s_sub_u32 s39, s31, {VOFF}
    v_add_u32 v{D0+2}, s39, v9
    s_mov_b32 s34, s28                 ; soffset i0
    s_mov_b32 s36, s29                 ; soffset i2
    s_mov_b32 s37, 0
    s_waitcnt lgkmcnt(0)""")
    srd(a, 16, 24, WS_SIZE)
    def dma():
        a(f"""s_add_u32 m0, s37, s30
        s_add_u32 s39, s37, s31
        buffer_load_dwordx4 v{D0}, s[16:19], s34 offen lds
        s_add_u32 m0, m0, 8192
        s_add_u32 s34, s34, 20480
        buffer_load_dwordx4 v{D0+1}, s[16:19], s35 offen lds
        s_mov_b32 m0, s39
        s_add_u32 s35, s35, s38
        buffer_load_dwordx4 v{D0+2}, s[16:19], s36 offen lds
        s_add_u32 s36, s36, 10240
        s_add_u32 s37, s37, {SLOT}
        s_cmp_eq_u32 s37, {SLOT*NSLOT}
        s_cselect_b32 s37, 0, s37""")
    dma()
    a(f"""s_lshl_b32 s40, s22, 3
    s_add_u32 s40, s40, s20            ; T
    s_mul_i32 s41, s40, 2560
    s_add_u32 s41, s41, s27            ; QB=0
    s_mul_i32 s42, s26, 1536
    s_add_u32 s42, s42, s41
    buffer_load_dwordx4 v[{QM}:{QM+3}], v9, s[16:19], s42 offen
    v_and_b32 v10, 31, v0
    v_lshlrev_b32 v11, 4, v10
    s_lshl_b32 s42, s26, 3
    s_add_u32 s42, s42, s41
    buffer_load_dwordx2 v[{QT}:{QT+1}], v11, s[16:19], s42 offen offset:1024""")
    dma(); dma()
    a(f"""; LDS read addresses
    s_lshl_b32 s42, s26, 9
    v_add_u32 v{AKM}, s42, v9
    v_lshrrev_b32 v12, 5, v0
    v_mul_u32_u24 v13, 1536, v12
    s_xor_b32 s42, s26, 1
    s_lshl_b32 s42, s42, 10
    s_lshl_b32 s43, s26, 3
    s_add_u32 s42, s42, s43
    v_add3_u32 v{AKT}, v13, v11, s42
    v_mul_u32_u24 v13, 320, v12
    s_movk_i32 s42, {VOFF}
    v_add3_u32 v{AV}, v13, v11, s42
    v_mov_b32 v{IDX}, 0xdddddddd
    s_mov_b32 s44, 0x000fffff
    s_mov_b32 s45, 0x000fffff""")
    for i in range(16):
        a(f"v_mov_b32 v{O+i}, 0")
        a(f"v_mov_b32 v{V[0]+i}, 0x3f803f80")
        a(f"v_mov_b32 v{V[1]+i}, 0x3f803f80")
    for i in range(8): a(f"v_mov_b32 v{S[1]+24+i}, 0")
    def rdK(buf, pl):
        return [f"ds_read_b64 v[{KT[buf]}:{KT[buf]+1}], v{AKT} offset:{pl*3072}",
                f"ds_read_b128 v[{KM[buf]}:{KM[buf]+3}], v{AKM} offset:{pl*3072}",
                f"ds_read_b128 v[{KM[buf]+4}:{KM[buf]+7}], v{AKM} offset:{pl*3072+1536}"]
    def rdV(buf, pl):
        return ["s_mov_b64 exec, s[44:45]"] + [f"ds_read_b128 v[{V[buf]+4*i}:{V[buf]+4*i+3}], v{AV} offset:{pl*2560+640*i}" for i in range(4)] + ["s_mov_b64 exec, -1"]
    def m2b(buf, kb): return f"v_mfma_f32_32x32x4_2b_bf16 v[{S[buf]}:{S[buf]+31}], v[{KT[kb]}:{KT[kb]+1}], v[{QT}:{QT+1}], 0"
    def m16(buf, kb, t): return f"v_mfma_f32_32x32x16_bf16 v[{S[buf]+16*t}:{S[buf]+16*t+15}], v[{KM[kb]+4*t}:{KM[kb]+4*t+3}], v[{QM}:{QM+3}], v[{S[buf]+16*t}:{S[buf]+16*t+15}]"
    def pv(buf, vb, i): return f"v_smfmac_f32_32x32x32_bf16 v[{O}:{O+15}], v[{V[vb]+4*i}:{V[vb]+4*i+3}], v[{S[buf]+8*i}:{S[buf]+8*i+7}], v{IDX}"
    def ex(buf, lo, hi):
        for i in range(lo, hi): a(f"v_exp_f32 v{S[buf]+i}, v{S[buf]+i}")
    a("s_waitcnt vmcnt(6)\ns_barrier")
    for r in rdK(0, 0): a(r)
    for r in rdK(1, 1): a(r)
    for r in rdV(0, 0): a(r)
    a("s_waitcnt lgkmcnt(7)")
    a(m2b(0, 0)); a(m16(0, 0, 0)); a(m16(0, 0, 1))
    a(f"s_mov_b32 s46, 0\ns_mov_b32 s47, 0\ns_movk_i32 s49, {SLOT}\ns_nop 7")
    a(".p2align 3\nK2_loop:")
    for it in range(4):
        c = it & 1; n = 1 - c
        ex(c, 0, 2)
        a(pv(n, n, 3))
        a("s_waitcnt lgkmcnt(0)")
        if it == 2:
            a(f"""s_add_u32 s46, s46, 1
            s_add_u32 s47, s47, {SLOT}
            s_cmp_eq_u32 s47, {SLOT*NSLOT}
            s_cselect_b32 s47, 0, s47
            s_cselect_b32 s48, {(-(NSLOT-1)*SLOT) & 0xffffffff}, s49
            s_waitcnt vmcnt(3)
            s_barrier
            v_add_u32 v{AKM}, s48, v{AKM}
            v_add_u32 v{AKT}, s48, v{AKT}""")
        if it == 3:
            a(f"v_add_u32 v{AV}, s48, v{AV}")
        for r in rdK(c, (it + 2) & 3): a(r)
        for r in rdV(n, (it + 1) & 3): a(r)
        ex(c, 2, 6)
        a(m2b(n, n))
        ex(c, 6, 14)
        a(pv(c, c, 0))
        if it == 2: dma()
        ex(c, 14, 18)
        a(pv(c, c, 1))
        ex(c, 18, 22)
        a(m16(n, n, 0))
        ex(c, 22, 26)
        a(m16(n, n, 1))
        ex(c, 26, 30)
        a(pv(c, c, 2))
        ex(c, 30, 32)
    a("s_cmp_lt_u32 s46, 8\ns_cbranch_scc1 K2_loop")
    a(pv(1, 1, 3))
    a(f"""s_mul_i32 s42, s21, 81920
    s_mul_i32 s43, s40, 1280
    s_add_u32 s42, s42, s43
    s_add_u32 s42, s42, {OB}
    v_lshlrev_b32 v11, 3, v10
    s_mov_b32 s48, {hx(2.0**-90)}
    s_mov_b32 s49, {hx(2.0**90)}
    v_cmp_nle_f32 vcc, s48, v{O+12}
    v_cmp_nge_f32 s[50:51], s49, v{O+12}
    s_or_b64 vcc, vcc, s[50:51]
    s_cbranch_vccnz K2_fallback
K2_fin:
    v_rcp_f32 v12, v{O+12}""")
    for i in range(6):
        a(f"v_pk_mul_f32 v[{O+2*i}:{O+2*i+1}], v[{O+2*i}:{O+2*i+1}], v[12:13] op_sel_hi:[1,0]")
    for i in range(6):
        a(f"v_cvt_pk_bf16_f32 v{O+i}, v{O+2*i}, v{O+2*i+1}")
    a(f"""buffer_store_dwordx4 v[{O}:{O+3}], v9, s[16:19], s42 offen
    s_mov_b32 exec_hi, 0
    buffer_store_dwordx2 v[{O+4}:{O+5}], v11, s[16:19], s42 offen offset:1024""")
    stamp_end(a, 1, 16, 2, 3)
    a("K2_exit:\ns_endpgm")
    MX = 14
    a(f"""K2_fallback:
    s_waitcnt vmcnt(0) lgkmcnt(0)
    s_lshl_b32 s43, s26, 9
    v_add_u32 v{AKM}, s43, v9
    v_lshrrev_b32 v12, 5, v0
    v_mul_u32_u24 v13, 2560, v12
    v_lshlrev_b32 v15, 4, v10
    s_xor_b32 s43, s26, 1
    s_lshl_b32 s43, s43, 10
    s_lshl_b32 s46, s26, 3
    s_add_u32 s43, s43, s46
    v_add3_u32 v{AKT}, v13, v15, s43
    v_mul_u32_u24 v13, 320, v12
    v_add_u32 v{AV}, v13, v15
    v_mov_b32 v{MX}, 0xff800000
    s_mov_b32 s46, 0
    s_mov_b32 s47, s28
K2_fb_max:
    buffer_load_dwordx2 v[{KT[0]}:{KT[0]+1}], v{AKT}, s[16:19], s47 offen
    buffer_load_dwordx4 v[{KM[0]}:{KM[0]+3}], v{AKM}, s[16:19], s47 offen
    buffer_load_dwordx4 v[{KM[0]+4}:{KM[0]+7}], v{AKM}, s[16:19], s47 offen offset:2560
    s_waitcnt vmcnt(0)""")
    a(m2b(0, 0)); a(m16(0, 0, 0)); a(m16(0, 0, 1))
    for i in range(16): a(f"v_max3_f32 v{MX}, v{MX}, v{S[0]+2*i}, v{S[0]+2*i+1}")
    a(f"""s_add_u32 s47, s47, 5120
    s_add_u32 s46, s46, 1
    s_cmp_lt_u32 s46, 32
    s_cbranch_scc1 K2_fb_max
    v_mov_b32 v15, v{MX}
    v_permlane32_swap_b32 v15, v{MX}
    v_max_f32 v{MX}, v15, v{MX}""")
    for i in range(16): a(f"v_mov_b32 v{O+i}, 0")
    a(f"""s_mov_b32 s46, 0
    s_mov_b32 s47, s28
    s_mov_b32 s48, s29
K2_fb_pv:
    buffer_load_dwordx2 v[{KT[0]}:{KT[0]+1}], v{AKT}, s[16:19], s47 offen
    buffer_load_dwordx4 v[{KM[0]}:{KM[0]+3}], v{AKM}, s[16:19], s47 offen
    buffer_load_dwordx4 v[{KM[0]+4}:{KM[0]+7}], v{AKM}, s[16:19], s47 offen offset:2560
    s_mov_b64 exec, s[44:45]""")
    for i in range(4): a(f"buffer_load_dwordx4 v[{V[0]+4*i}:{V[0]+4*i+3}], v{AV}, s[16:19], s48 offen offset:{640*i}")
    a("s_mov_b64 exec, -1\ns_waitcnt vmcnt(0)")
    a(m2b(0, 0)); a(m16(0, 0, 0)); a(m16(0, 0, 1))
    for i in range(32): a(f"v_sub_f32 v{S[0]+i}, v{S[0]+i}, v{MX}")
    ex(0, 0, 32)
    for i in range(4): a(pv(0, 0, i))
    a(f"""s_add_u32 s47, s47, 5120
    s_add_u32 s48, s48, 2560
    s_add_u32 s46, s46, 1
    s_cmp_lt_u32 s46, 32
    s_cbranch_scc1 K2_fb_pv
    s_nop 7
    s_branch K2_fin""")
    return dict(name="k2_kernel", lines=a.lines, vgpr=160, grid=256, block=512, lds=SLOT*NSLOT)

def k3():
    a = Asm()
    RED = 106496
    stamp_begin(a)
    a(f"""s_cmp_ge_u32 s2, 256
    s_cbranch_scc1 K3_exit
    s_load_dwordx2 s[4:5], s[0:1], 0
    s_load_dwordx2 s[6:7], s[0:1], 16
    s_load_dwordx2 s[28:29], s[0:1], 32
    s_load_dwordx2 s[24:25], s[0:1], 80
    v_lshrrev_b32 v1, 6, v0
    v_and_b32 v0, 63, v0
    s_and_b32 s21, s2, 7
    v_readfirstlane_b32 s20, v1
    s_lshl_b32 s21, s21, 2
    s_bfe_u32 s22, s2, 0x20003
    s_add_u32 s21, s21, s22
    s_lshr_b32 s22, s2, 5              ; cg (0..7)
    s_and_b32 s26, s20, 3              ; mt
    s_lshr_b32 s27, s20, 2             ; kh
    s_lshl_b32 s30, s20, 6
    v_add_u32 v1, s30, v0              ; U0 = 64*w + l
    s_mul_i32 s31, s22, 160""")
    for j in range(5):
        a(f"""v_add_u32 v2, {512*j}, v1
        v_mul_u32_u24 v3, 6554, v2
        v_lshrrev_b32 v3, 16, v3           ; row = U/10
        v_mul_u32_u24 v4, {1280-160}, v3
        v_lshl_add_u32 v4, v2, 4, v4
        v_add_u32 v{10+j}, s31, v4""")
    a("s_waitcnt lgkmcnt(0)")
    srd(a, 8, 4, 2621440); srd(a, 12, 6, 819200); srd(a, 16, 24, WS_SIZE); srd(a, 32, 28, 1280)
    a(f"""v_and_b32 v5, 15, v0               ; tok
    v_lshrrev_b32 v6, 4, v0            ; kg / g
    s_lshl_b32 s36, s21, 1
    s_lshr_b32 s37, s26, 1
    s_add_u32 s36, s36, s37            ; T
    s_mul_i32 s36, s36, 1280
    s_mul_i32 s37, s27, {16*81920}
    s_add_u32 s36, s36, s37
    s_add_u32 s36, s36, {OB}
    s_and_b32 s37, s26, 1
    s_lshl_b32 s37, s37, 4
    v_add_u32 v7, s37, v5
    v_lshrrev_b32 v2, 1, v6
    v_mul_u32_u24 v2, 81920, v2
    v_and_b32 v3, 1, v6
    v_lshl_add_u32 v2, v3, 9, v2
    v_lshl_add_u32 v8, v7, 4, v2
    v_mul_u32_u24 v2, {2*81920}, v6
    v_lshl_add_u32 v9, v7, 3, v2
    s_lshl_b32 s38, s20, 10
    s_mov_b32 m0, s38
    s_mov_b32 s39, 0""")
    OF = 24
    def odma(j):
        a(f"buffer_load_dwordx4 v{10 + j%5}, s[12:15], s39 offen lds")
        a(f"s_add_u32 m0, m0, 8192")
        if j % 5 == 4: a(f"s_add_u32 s39, s39, {256*1280}")
        else: a("s_nop 0")
    for j in range(13): odma(j)
    a("s_mov_b32 s40, s36")
    for s in range(8):
        a(f"buffer_load_dwordx4 v[{OF+4*s}:{OF+4*s+3}], v8, s[16:19], s40 offen")
        a(f"s_add_u32 s40, s40, {2*81920}")
    for s in range(2):
        for t in range(2):
            a(f"s_add_u32 s40, s36, {(8*s+t)*81920}")
            a(f"buffer_load_dwordx2 v[{OF+32+4*s+2*t}:{OF+33+4*s+2*t}], v9, s[16:19], s40 offen offset:1024")
    XR = 64; WR = 74
    a(f"""s_lshl_b32 s41, s21, 6
    s_lshl_b32 s42, s26, 4
    s_add_u32 s41, s41, s42
    v_add_u32 v15, s41, v5             ; token
    v_mul_u32_u24 v16, 1280, v15
    v_mul_u32_u24 v17, 40, v6
    v_add_u32 v17, s31, v17
    v_add_u32 v16, v16, v17""")
    for j in range(5):
        a(f"buffer_load_dwordx2 v[{XR+2*j}:{XR+2*j+1}], v16, s[8:11], 0 offen offset:{8*j}")
    for j in range(5):
        a(f"buffer_load_dwordx2 v[{WR+2*j}:{WR+2*j+1}], v17, s[32:35], 0 offen offset:{8*j}")
    a(f"""v_bfe_u32 v2, v0, 2, 2             ; r
    v_and_b32 v3, 3, v0                ; c
    v_mul_u32_u24 v3, 40, v3
    v_lshrrev_b32 v4, 1, v6
    v_mul_u32_u24 v4, 20, v4
    v_and_b32 v18, 1, v6
    v_lshl_add_u32 v4, v18, 2, v4
    v_add_u32 v4, v4, v2
    s_mul_i32 s42, s27, 320
    v_add_u32 v4, s42, v4
    v_mul_u32_u24 v4, 160, v4
    v_add_u32 v18, v4, v3
    v_mul_u32_u24 v4, 40, v6
    v_add3_u32 v4, v4, v2, s42
    v_add_u32 v4, 16, v4
    v_mul_u32_u24 v4, 160, v4
    v_add_u32 v19, v4, v3""")
    ACC = 84
    for i in range(20): a(f"v_mov_b32 v{ACC+i}, 0")
    WF = [104, 124]
    def rdW(buf, s):
        out = []
        for j in range(5):
            for t in range(2):
                if s < 8: out.append(f"ds_read_b64_tr_b16 v[{WF[buf]+4*j+2*t}:{WF[buf]+4*j+2*t+1}], v18 offset:{6400*s+1280*t+8*j}")
                else: out.append(f"ds_read_b64_tr_b16 v[{WF[buf]+4*j+2*t}:{WF[buf]+4*j+2*t+1}], v19 offset:{25600*(s-8)+3200*t+8*j}")
        return out
    a("s_waitcnt vmcnt(22)\ns_barrier")
    for r in rdW(0, 0): a(r)
    for s in range(10):
        nO = 12 - (s + 1 if s < 8 else 8 + 2*(s - 7))
        if s < 9:
            for r in rdW((s + 1) & 1, s + 1): a(r)
            a(f"s_waitcnt vmcnt({10 + nO}) lgkmcnt(10)")
        else:
            a(f"s_waitcnt vmcnt({10 + nO}) lgkmcnt(0)")
        for j in range(5):
            a(f"v_mfma_f32_16x16x32_bf16 v[{ACC+4*j}:{ACC+4*j+3}], v[{WF[s&1]+4*j}:{WF[s&1]+4*j+3}], v[{OF+4*s}:{OF+4*s+3}], v[{ACC+4*j}:{ACC+4*j+3}]")
    a(f"""s_mul_i32 s42, s26, 5120
    s_add_u32 s42, s42, {RED}
    v_lshl_add_u32 v2, v0, 4, s42
    s_cmp_eq_u32 s27, 0
    s_cbranch_scc1 K3_fin""")
    for j in range(5): a(f"ds_write_b128 v2, v[{ACC+4*j}:{ACC+4*j+3}] offset:{1024*j}")
    a("s_waitcnt lgkmcnt(0)\ns_barrier")
    stamp_end(a, 2, 16, 2, 3)
    a("s_endpgm\nK3_fin:\ns_barrier")
    for j in range(5): a(f"ds_read_b128 v[{24+4*j}:{27+4*j}], v2 offset:{1024*j}")
    a("s_mov_b32 s33, 0xffff0000\nv_mov_b32 v20, 0\nv_mov_b32 v21, 0\nv_mov_b32 v22, 0\ns_waitcnt vmcnt(0) lgkmcnt(0)")
    for j in range(5):
        for i in range(2):
            r = ACC + 4*j + 2*i; xr = XR + 2*j + i; wr = WR + 2*j + i
            a(f"""v_pk_add_f32 v[{r}:{r+1}], v[{r}:{r+1}], v[{24+4*j+2*i}:{25+4*j+2*i}]
            v_lshlrev_b32 v44, 16, v{xr}
            v_and_b32 v45, s33, v{xr}
            v_pk_add_f32 v[{r}:{r+1}], v[{r}:{r+1}], v[44:45]
            v_cvt_pk_bf16_f32 v{xr}, v{r}, v{r+1}
            v_lshlrev_b32 v46, 16, v{wr}
            v_and_b32 v47, s33, v{wr}
            v_lshlrev_b32 v44, 16, v{xr}
            v_and_b32 v45, s33, v{xr}
            v_add_f32 v20, v20, v44
            v_fmac_f32 v21, v44, v44
            v_fmac_f32 v22, v44, v46
            v_add_f32 v20, v20, v45
            v_fmac_f32 v21, v45, v45
            v_fmac_f32 v22, v45, v47""")
        a(f"s_mov_b32 s43, {HB}\nbuffer_store_dwordx2 v[{XR+2*j}:{XR+2*j+1}], v16, s[16:19], s43 offen offset:{8*j}")
    a(f"""v_mov_b32 v23, 0
    v_permlane32_swap_b32 v20, v22
    v_permlane32_swap_b32 v21, v23
    v_add_f32 v20, v20, v22
    v_add_f32 v21, v21, v23
    v_permlane16_swap_b32 v20, v21
    v_add_f32 v20, v20, v21            ; g0: s1, g1: s2, g2: s3, g3: 0
    v_lshlrev_b32 v2, 4, v15
    v_lshl_add_u32 v2, v6, 2, v2
    s_mov_b32 s43, {ST}
    buffer_atomic_add_f32 v20, v2, s[16:19], s43 offen""")
    stamp_end(a, 2, 16, 2, 3)
    a("K3_exit:\ns_endpgm")
    return dict(name="k3_kernel", lines=a.lines, vgpr=144, grid=256, block=512, lds=RED + 4*5120)

def k4():
    a = Asm()
    UPO = 10240 + 64; RED = 20800
    stamp_begin(a)
    a(f"""s_cmp_ge_u32 s2, 256
    s_cbranch_scc1 K4_exit
    s_load_dwordx2 s[28:29], s[0:1], 32
    s_load_dwordx4 s[4:7], s[0:1], 40
    s_load_dwordx2 s[26:27], s[0:1], 64
    s_load_dwordx2 s[24:25], s[0:1], 80
    v_lshrrev_b32 v1, 6, v0
    v_lshlrev_b32 v2, 4, v0            ; tid*16
    v_readfirstlane_b32 s20, v1
    v_and_b32 v1, 63, v0               ; lane
    s_waitcnt lgkmcnt(0)""")
    srd(a, 8, 4, 1966080); srd(a, 12, 6, 1966080); srd(a, 16, 24, WS_SIZE); srd(a, 32, 28, 1280); srd(a, 36, 26, 2621440)
    STR = 24
    a(f"s_mov_b32 s40, {ST}")
    for i in range(8):
        a(f"buffer_load_dwordx4 v[{STR+4*i}:{STR+4*i+3}], v2, s[16:19], s40 offen\ns_add_u32 s40, s40, 4096")
    a("v_lshlrev_b32 v3, 2, v1")
    for i in range(5): a(f"buffer_load_dword v{56+i}, v3, s[32:35], 0 offen offset:{256*i}")
    HR = 64; SR = 76
    a(f"s_mul_i32 s41, s2, 10240\ns_add_u32 s42, s41, {HB}\ns_lshl_b32 s43, s2, 7\ns_add_u32 s43, s43, {ST}")
    for i in range(3):
        a(f"""v_add_u32 v4, {256*i}, v0
        v_min_u32 v4, 639, v4
        v_lshlrev_b32 v{10+i}, 4, v4
        v_mul_u32_u24 v5, 820, v4
        v_lshrrev_b32 v{13+i}, 16, v5
        v_lshlrev_b32 v5, 4, v{13+i}
        buffer_load_dwordx4 v[{HR+4*i}:{HR+4*i+3}], v{10+i}, s[16:19], s42 offen
        buffer_load_dwordx2 v[{SR+2*i}:{SR+2*i+1}], v5, s[16:19], s43 offen""")
    a(f"""s_lshr_b32 s21, s2, 3
    s_and_b32 s22, s2, 7
    s_mul_i32 s22, s22, 24
    s_add_u32 s22, s22, s21            ; fs
    s_cmp_ge_u32 s21, 24
    s_cbranch_scc1 K4_nodma
    v_mul_u32_u24 v4, 3072, v1
    s_lshl_b32 s44, s22, 4
    s_and_b32 s45, s20, 1
    s_mul_i32 s46, s45, {5*64*3072}
    s_add_u32 s44, s44, s46
    s_mul_i32 s45, s45, 5120
    s_cmp_ge_u32 s20, 2
    s_cbranch_scc1 K4_dmaup
    s_mov_b32 m0, s45""")
    for i in range(5):
        a(f"s_nop 0\nbuffer_load_dwordx4 v4, s[8:11], s44 offen lds\ns_add_u32 m0, m0, 1024\ns_add_u32 s44, s44, {64*3072}")
    a(f"s_branch K4_nodma\nK4_dmaup:\ns_add_u32 m0, s45, {UPO}")
    for i in range(5):
        a(f"s_nop 0\nbuffer_load_dwordx4 v4, s[12:15], s44 offen lds\ns_add_u32 m0, m0, 1024\ns_add_u32 s44, s44, {64*3072}")
    a("K4_nodma:\ns_mov_b32 s33, 0xffff0000\ns_waitcnt vmcnt(0)")
    a("v_mov_b32 v6, 0")
    for i in range(5):
        a(f"v_lshlrev_b32 v4, 16, v{56+i}\nv_and_b32 v5, s33, v{56+i}\nv_add_f32 v6, v6, v4\nv_add_f32 v6, v6, v5")
    def wave_sum(v, t):
        a(f"""v_add_f32_dpp v{v}, v{v}, v{v} quad_perm:[1,0,3,2] row_mask:0xf bank_mask:0xf
        v_add_f32_dpp v{v}, v{v}, v{v} quad_perm:[2,3,0,1] row_mask:0xf bank_mask:0xf
        v_add_f32_dpp v{v}, v{v}, v{v} row_half_mirror row_mask:0xf bank_mask:0xf
        v_add_f32_dpp v{v}, v{v}, v{v} row_mirror row_mask:0xf bank_mask:0xf
        v_mov_b32 v{t}, v{v}
        v_permlane16_swap_b32 v{t}, v{v}
        v_add_f32 v{v}, v{v}, v{t}
        v_mov_b32 v{t}, v{v}
        v_permlane32_swap_b32 v{t}, v{v}
        v_add_f32 v{v}, v{v}, v{t}""")
    wave_sum(6, 4)
    a(f"v_mov_b32 v7, 0\nv_mov_b32 v8, 0\ns_mov_b32 s44, {hx(1.0/640)}\ns_mov_b32 s45, 0xfffff800\nv_sub_u32 v9, 2047, v0")
    for i in range(8):
        b = STR + 4*i
        a(f"""v_mul_f32 v{b}, s44, v{b}
        v_mul_f32 v{b+1}, s44, v{b+1}
        v_fma_f32 v{b+1}, -v{b}, v{b}, v{b+1}
        v_max_f32 v{b+1}, 0, v{b+1}
        v_add_f32 v{b+1}, {hx(1e-5)}, v{b+1}
        v_rsq_f32 v{b+1}, v{b+1}
        v_fma_f32 v{b+2}, -v{b}, v6, v{b+2}
        v_mul_f32 v{b+2}, v{b+2}, v{b+1}       ; r
        v_ashrrev_i32 v4, 31, v{b+2}
        v_or_b32 v4, 0x80000000, v4
        v_xor_b32 v4, v4, v{b+2}               ; sortable
        v_subrev_u32 v5, {256*i}, v9
        v_and_or_b32 v4, v4, s45, v5
        v_med3_u32 v8, v7, v8, v4
        v_max_u32 v7, v7, v4""")
    def merge_dpp(mod):
        a(f"""v_mov_b32_dpp v4, v7 {mod} row_mask:0xf bank_mask:0xf
        v_max_u32_dpp v8, v8, v8 {mod} row_mask:0xf bank_mask:0xf
        v_med3_u32 v8, v7, v4, v8
        v_max_u32 v7, v7, v4""")
    for mod in ("quad_perm:[1,0,3,2]", "quad_perm:[2,3,0,1]", "row_half_mirror", "row_mirror"): merge_dpp(mod)
    for sw in ("v_permlane16_swap_b32", "v_permlane32_swap_b32"):
        a(f"""v_mov_b32 v4, v7
        v_mov_b32 v5, v8
        {sw} v4, v7
        {sw} v5, v8
        v_max_u32 v8, v8, v5
        v_med3_u32 v8, v7, v4, v8
        v_max_u32 v7, v7, v4""")
    a(f"""s_lshl_b32 s44, s20, 3
    s_add_u32 s44, s44, {RED}
    v_mov_b32 v4, s44
    v_mov_b32 v16, v7
    v_mov_b32 v17, v8
    ds_write_b64 v4, v[16:17]
    v_mov_b32 v4, {RED}
    s_waitcnt lgkmcnt(0)
    s_barrier
    ds_read_b128 v[16:19], v4
    ds_read_b128 v[20:23], v4 offset:16
    s_waitcnt lgkmcnt(0)
    v_max_u32 v8, v17, v19
    v_med3_u32 v8, v16, v18, v8
    v_max_u32 v7, v16, v18
    v_max_u32 v8, v8, v21
    v_med3_u32 v8, v7, v20, v8
    v_max_u32 v7, v7, v20
    v_max_u32 v8, v8, v23
    v_med3_u32 v8, v7, v22, v8
    v_max_u32 v7, v7, v22
    v_and_b32 v7, 0x7ff, v7
    v_and_b32 v8, 0x7ff, v8
    v_sub_u32 v7, 2047, v7             ; idx0
    v_sub_u32 v8, 2047, v8             ; idx1""")
    BF = 96; AF = 176
    a(f"""s_cmp_ge_u32 s21, 24
    s_cselect_b32 s47, 1, s20
    s_cmp_lg_u32 s47, 0
    s_cbranch_scc1 K4_out
    v_and_b32 v4, 1, v1
    v_cmp_eq_u32 vcc, 0, v4
    v_cndmask_b32 v20, v8, v7, vcc
    v_mul_u32_u24 v21, 1280, v20
    v_lshrrev_b32 v22, 4, v1           ; kg
    v_lshl_add_u32 v21, v22, 4, v21
    v_lshlrev_b32 v23, 4, v20""")
    for i in range(80): a(f"v_mov_b32 v{BF+i}, 0x3f803f80")
    a(f"s_mov_b32 s48, 0x00030003\ns_mov_b32 s49, 0x00030003\ns_mov_b64 exec, s[48:49]\ns_mov_b32 s44, {HB}\ns_mov_b32 s45, {ST}")
    for s in range(20): a(f"buffer_load_dwordx4 v[{BF+4*s}:{BF+4*s+3}], v21, s[16:19], s44 offen offset:{64*s}")
    a(f"""buffer_load_dwordx4 v[88:91], v23, s[16:19], s45 offen
    s_mov_b64 exec, -1
    v_bfe_u32 v4, v1, 2, 2             ; r
    v_lshl_add_u32 v4, v22, 3, v4      ; 8kg + r
    v_lshlrev_b32 v4, 4, v4
    v_and_b32 v5, 1, v1
    v_lshl_add_u32 v4, v5, 3, v4
    v_bfe_u32 v5, v1, 1, 1
    v_mul_u32_u24 v5, {UPO}, v5
    v_add_u32 v4, v4, v5""")
    for s in range(20):
        for t in range(2):
            a(f"ds_read_b64_tr_b16 v[{AF+4*s+2*t}:{AF+4*s+2*t+1}], v4 offset:{512*s+64*t}")
        if s % 4 == 3: a("s_waitcnt lgkmcnt(0)")
    for i in range(4): a(f"v_mov_b32 v{84+i}, 0")
    a("s_waitcnt vmcnt(0) lgkmcnt(0)")
    for s in range(20):
        a(f"v_mfma_f32_16x16x32_bf16 v[84:87], v[{AF+4*s}:{AF+4*s+3}], v[{BF+4*s}:{BF+4*s+3}], v[84:87]")
    a(f"""s_mov_b32 s44, {hx(1.0/640)}
    v_mul_f32 v88, s44, v88            ; mean
    v_mul_f32 v89, s44, v89
    v_fma_f32 v89, -v88, v88, v89
    v_max_f32 v89, 0, v89
    v_add_f32 v89, {hx(1e-5)}, v89
    v_rsq_f32 v89, v89                 ; rstd
    v_fma_f32 v90, -v88, v6, v90
    v_mul_f32 v90, v90, v89            ; r""")
    for i in range(4):
        a(f"""v_mov_b32_dpp v92, v{84+i} quad_perm:[2,2,2,2] row_mask:0xf bank_mask:0xf
        v_fma_f32 v{84+i}, -v88, v92, v{84+i}
        v_mul_f32 v{84+i}, v{84+i}, v89""")
    L2E = 1.4426950408889634
    for i in range(4):
        a(f"""v_mov_b32 v{92+i}, v{84+i}""")
    for i in range(4):
        a(f"v_permlane32_swap_b32 v{92+i}, v{84+i}")
    for i in range(4):
        a(f"""v_mul_f32 v4, {hx(-L2E)}, v{92+i}
        v_exp_f32 v4, v4
        v_add_f32 v4, 1.0, v4
        v_rcp_f32 v4, v4
        v_mul_f32 v4, v4, v{92+i}
        v_mul_f32 v{84+i}, v4, v{84+i}""")
    a(f"""v_cvt_pk_bf16_f32 v84, v84, v85
    v_cvt_pk_bf16_f32 v85, v86, v87
    v_and_b32 v4, 1, v1
    v_mul_u32_u24 v4, 3072, v4
    v_lshl_add_u32 v4, v22, 3, v4
    s_lshl_b32 s44, s22, 4
    s_add_u32 s44, s44, {ACT}
    s_mov_b64 exec, 0x00030003
    buffer_store_dwordx2 v[84:85], v4, s[16:19], s44 offen
    s_cmp_lg_u32 s2, 0
    s_cbranch_scc1 K4_nosel
    s_mov_b64 exec, 3
    v_mul_f32 v90, {hx(-L2E)}, v90
    v_exp_f32 v90, v90
    v_add_f32 v90, 1.0, v90
    v_rcp_f32 v90, v90
    v_mov_b32 v91, v20
    v_lshlrev_b32 v4, 4, v1
    s_mov_b32 s44, {SEL}
    buffer_store_dwordx4 v[88:91], v4, s[16:19], s44 offen
K4_nosel:
    s_mov_b64 exec, -1
K4_out:
    s_mov_b32 s44, {hx(1.0/640)}
    s_lshl_b32 s45, s2, 3""")
    for i in range(3):
        m = SR + 2*i
        a(f"""v_mul_f32 v{m}, s44, v{m}
        v_mul_f32 v{m+1}, s44, v{m+1}
        v_fma_f32 v{m+1}, -v{m}, v{m}, v{m+1}
        v_max_f32 v{m+1}, 0, v{m+1}
        v_add_f32 v{m+1}, {hx(1e-5)}, v{m+1}
        v_rsq_f32 v{m+1}, v{m+1}
        v_add_u32 v{13+i}, s45, v{13+i}
        v_mul_f32 v{m}, -v{m}, v{m+1}
        v_add_f32 v{m+1}, 1.0, v{m+1}""")
        for k in range(4):
            a(f"""v_lshlrev_b32 v4, 16, v{HR+4*i+k}
            v_and_b32 v5, s33, v{HR+4*i+k}
            v_fma_f32 v4, v4, v{m+1}, v{m}
            v_fma_f32 v5, v5, v{m+1}, v{m}
            v_cvt_pk_bf16_f32 v{HR+4*i+k}, v4, v5""")
        a(f"buffer_store_dwordx4 v[{HR+4*i}:{HR+4*i+3}], v{10+i}, s[36:39], s41 offen")
    stamp_end(a, 3, 16, 2, 3)
    a("K4_exit:\ns_endpgm")
    return dict(name="k4_kernel", lines=a.lines, vgpr=256, grid=256, block=256, lds=RED + 64)

def k5():
    a = Asm()
    RED = 49152
    stamp_begin(a)
    a(f"""s_cmp_ge_u32 s2, 40
    s_cbranch_scc1 K5_exit
    s_load_dwordx4 s[4:7], s[0:1], 56
    s_load_dwordx2 s[24:25], s[0:1], 80
    v_lshrrev_b32 v1, 6, v0
    s_and_b32 s22, s2, 7
    v_readfirstlane_b32 s20, v1
    v_and_b32 v0, 63, v0
    s_mul_i32 s22, s22, 5
    s_lshr_b32 s21, s2, 3
    s_add_u32 s22, s22, s21
    v_lshrrev_b32 v2, 1, v0
    v_mul_u32_u24 v2, 1280, v2
    v_and_b32 v3, 1, v0
    v_lshl_add_u32 v2, v3, 4, v2
    s_mul_i32 s26, s20, {384*1280}
    s_lshl_b32 s27, s22, 5
    s_add_u32 s26, s26, s27
    s_mul_i32 s28, s20, 12288
    s_mov_b32 m0, s28
    s_waitcnt lgkmcnt(0)""")
    srd(a, 8, 4, 1966080); srd(a, 12, 6, 2621440); srd(a, 16, 24, WS_SIZE)
    BF = 24; AF = 72
    a(f"""v_lshrrev_b32 v6, 4, v0
    v_mul_u32_u24 v4, 3072, v3
    v_lshl_add_u32 v4, v6, 4, v4
    s_mul_i32 s29, s20, 768
    s_add_u32 s29, s29, {ACT}
    v_lshlrev_b32 v5, 4, v3
    s_mov_b32 s30, {SEL}
    buffer_load_dwordx4 v[16:19], v5, s[16:19], s30 offen""")
    for s in range(12): a(f"buffer_load_dwordx4 v[{BF+4*s}:{BF+4*s+3}], v4, s[16:19], s29 offen offset:{64*s}")
    for s in range(12):
        a(f"buffer_load_dwordx4 v2, s[8:11], s26 offen lds\ns_add_u32 m0, m0, 1024\ns_add_u32 s26, s26, {32*1280}")
    a(f"""v_bfe_u32 v7, v0, 2, 2
    v_lshl_add_u32 v7, v6, 3, v7
    v_lshlrev_b32 v7, 5, v7
    v_and_b32 v8, 3, v0
    v_lshl_add_u32 v7, v8, 3, v7
    v_add_u32 v7, s28, v7
    s_waitcnt vmcnt(24)
    v_mul_u32_u24 v9, 1280, v19
    v_lshl_add_u32 v9, v6, 3, v9
    v_add_u32 v9, s27, v9
    s_mov_b32 s30, {HB}
    buffer_load_dwordx2 v[20:21], v9, s[16:19], s30 offen""")
    for i in range(4): a(f"v_mov_b32 v{12+i}, 0")
    a("s_waitcnt vmcnt(0)")
    for s in range(12):
        for t in range(2):
            a(f"ds_read_b64_tr_b16 v[{AF+4*s+2*t}:{AF+4*s+2*t+1}], v7 offset:{1024*s+128*t}")
        if s % 4 == 3: a("s_waitcnt lgkmcnt(0)")
    for s in range(12):
        a(f"v_mfma_f32_16x16x32_bf16 v[12:15], v[{AF+4*s}:{AF+4*s+3}], v[{BF+4*s}:{BF+4*s+3}], v[12:15]")
    a(f"""s_lshl_b32 s29, s20, 10
    s_add_u32 s29, s29, {RED}
    v_lshl_add_u32 v10, v0, 4, s29
    ds_write_b128 v10, v[12:15]
    s_waitcnt lgkmcnt(0)
    s_barrier
    s_cmp_lg_u32 s20, 0
    s_cbranch_scc1 K5_done
    ds_read_b128 v[24:27], v10 offset:1024
    ds_read_b128 v[28:31], v10 offset:2048
    ds_read_b128 v[32:35], v10 offset:3072
    s_mov_b32 s33, 0xffff0000
    v_mul_f32 v16, -v16, v17
    v_add_f32 v17, 1.0, v17
    v_lshlrev_b32 v36, 16, v20
    v_and_b32 v37, s33, v20
    v_lshlrev_b32 v38, 16, v21
    v_and_b32 v39, s33, v21
    s_waitcnt lgkmcnt(0)""")
    for i in range(4):
        a(f"""v_add_f32 v{12+i}, v{12+i}, v{24+i}
        v_add_f32 v{28+i}, v{28+i}, v{32+i}
        v_add_f32 v{12+i}, v{12+i}, v{28+i}
        v_fma_f32 v{36+i}, v{36+i}, v17, v16
        v_fma_f32 v{36+i}, v{12+i}, v18, v{36+i}""")
    a(f"""v_cvt_pk_bf16_f32 v36, v36, v37
    v_cvt_pk_bf16_f32 v37, v38, v39
    s_mov_b32 s30, 0x00030003
    s_mov_b32 s31, 0x00030003
    s_mov_b64 exec, s[30:31]
    buffer_store_dwordx2 v[36:37], v9, s[12:15], 0 offen
K5_done:""")
    stamp_end(a, 4, 16, 2, 3)
    a("K5_exit:\ns_endpgm")
    return dict(name="k5_kernel", lines=a.lines, vgpr=128, grid=40, block=256, lds=RED + 4096)

def emit(kernels, path, verbose=True):
    hdr = open(f"cdna_kernels/{NAME}.s.ref").read().split("; Override launch")[0]
    out = hdr
    for k in kernels:
        out += f"; @launch kernel={k['name']} grid=({k['grid']},1,1) block=({k['block']},1,1) lds={k['lds']}\n"
    out += '.amdgcn_target "amdgcn-amd-amdhsa--gfx950"\n.text\n'
    seen = []
    for k in kernels:
        if k['name'] in seen: continue
        seen.append(k['name'])
        lines = fix_hazards(k['lines'], verbose, k['name'])
        out += f".globl {k['name']}\n.p2align 8\n.type {k['name']},@function\n{k['name']}:\n" + "\n".join(lines) + "\n"
    out += '.section .rodata,"a"\n'
    seen = []
    for k in kernels:
        if k['name'] in seen: continue
        seen.append(k['name'])
        out += f""".p2align 6
.amdhsa_kernel {k['name']}
  .amdhsa_next_free_vgpr {k['vgpr']}
  .amdhsa_next_free_sgpr 96
  .amdhsa_accum_offset {k['vgpr']}
  .amdhsa_group_segment_fixed_size 0
  .amdhsa_kernarg_size 88
  .amdhsa_user_sgpr_count 2
  .amdhsa_user_sgpr_kernarg_segment_ptr 1
  .amdhsa_system_sgpr_workgroup_id_x 1
.end_amdhsa_kernel
"""
    open(path, "w").write(out)

if __name__ == "__main__":
    path = [x for x in sys.argv[1:] if not x.startswith("--")][0]
    emit([k1(), k2(), k3(), k4(), k5()], path)
```

```python
import sys, struct
sys.path.insert(0, "gen")
from asmlib import Asm, fix_hazards

NAME = "sequential_preLN__mha_block__moe_arch_mod__prompt"
QB = 0x000000; KB = 0x280000; VB = 0x500000; OB = 0x780000; HB = 0xA00000
ST = 0xC80000; ACT = 0xC90000; SEL = 0xC94000; TS = 0xD00000; WS_SIZE = 0xE00000
STAMP = "--stamp" in sys.argv

def f2u(x): return struct.unpack("<I", struct.pack("<f", x))[0]
def hx(x): return hex(f2u(x))

def srd(a, d, b, size):
    a(f"""s_mov_b32 s{d}, s{b}
    s_and_b32 s{d+1}, s{b+1}, 0xffff
    s_mov_b32 s{d+2}, {size}
    s_mov_b32 s{d+3}, 0x20000""")

def stamp_begin(a):
    if STAMP: a("s_memrealtime s[90:91]\ns_memtime s[86:87]\ns_mov_b32 s84, 0")
def stamp_mid(a):
    if STAMP: a("s_memtime s[84:85]")
def stamp_end(a, kid, srdws, vt0, vt1):
    if STAMP:
        a(f"""s_memrealtime s[92:93]
        s_memtime s[88:89]
        s_waitcnt lgkmcnt(0)
        s_sub_u32 s88, s88, s86
        s_sub_u32 s84, s84, s86
        s_lshl_b32 s94, s2, 3
        s_add_u32 s94, s94, s20
        s_lshl_b32 s94, s94, 4
        s_add_u32 s94, s94, {TS + kid*65536}
        v_mov_b32 v4, s90
        v_mov_b32 v5, s92
        v_mov_b32 v6, s88
        v_mov_b32 v7, s84
        s_mov_b64 exec, 1
        buffer_store_dwordx4 v[4:7], off, s[{srdws}:{srdws+3}], s94
        s_waitcnt vmcnt(0)""")

def k1():
    a = Asm()
    SLOT = 32768; WOFF = 16384; STAB = 131072
    stamp_begin(a)
    a(f"""s_cmp_ge_u32 s2, 256
    s_cbranch_scc1 K1_exit
    s_load_dwordx4 s[4:7], s[0:1], 0
    s_load_dwordx2 s[24:25], s[0:1], 80
    v_lshrrev_b32 v1, 6, v0
    v_and_b32 v0, 63, v0
    s_and_b32 s23, s2, 7
    v_readfirstlane_b32 s20, v1
    s_lshr_b32 s26, s2, 3
    s_lshr_b32 s21, s23, 1
    s_lshl_b32 s21, s21, 2
    s_and_b32 s27, s26, 3
    s_add_u32 s21, s21, s27          ; rb
    s_and_b32 s22, s23, 1
    s_lshl_b32 s22, s22, 3
    s_lshr_b32 s27, s26, 2
    s_add_u32 s22, s22, s27          ; cg
    s_waitcnt lgkmcnt(0)""")
    srd(a, 8, 4, 2621440); srd(a, 12, 6, 2457600); srd(a, 16, 24, WS_SIZE)
    a(f"""s_cmp_eq_u32 s22, 15
    s_cbranch_scc1 K1_spare
    s_cmp_lt_u32 s20, 4
    s_cbranch_scc1 K1_consumer""")
    a(f"""s_sub_u32 s26, s20, 4          ; lw
    s_add_u32 s27, s21, s22
    s_cmp_ge_u32 s27, 20
    s_cselect_b32 s28, 20, 0
    s_sub_u32 s27, s27, s28
    s_cmp_ge_u32 s27, 10
    s_cselect_b32 s28, 10, 0
    s_sub_u32 s27, s27, s28            ; kc = (rb+cg)%10
    v_lshrrev_b32 v1, 3, v0            ; r8
    v_and_b32 v2, 7, v0
    v_lshrrev_b32 v3, 1, v1            ; r8>>1
    v_xor_b32 v2, v2, v3
    s_lshl_b32 s28, s21, 7
    s_lshl_b32 s29, s26, 5
    s_add_u32 s28, s28, s29
    v_add_u32 v1, s28, v1              ; row (j=0)
    v_mul_u32_u24 v1, 1280, v1
    v_xor_b32 v3, 4, v2
    v_lshl_add_u32 v10, v2, 4, v1
    v_lshl_add_u32 v11, v3, 4, v1
    v_add_u32 v12, {2*(10240-1024)}, v10
    v_add_u32 v11, {1*(10240-1024)}, v11
    v_add_u32 v13, {2*(10240-1024)}, v11
    v_lshrrev_b32 v1, 4, v0            ; r4
    v_and_b32 v2, 15, v0
    v_lshlrev_b32 v3, 2, v1
    v_xor_b32 v2, v2, v3
    s_lshl_b32 s28, s26, 4
    v_add_u32 v1, s28, v1
    v_mul_u32_u24 v1, 3840, v1
    s_lshl_b32 s28, s22, 8
    v_lshl_add_u32 v1, v2, 4, v1
    v_add_u32 v14, s28, v1
    v_add_u32 v15, {1*(15360-1024)}, v14
    v_add_u32 v16, {2*(15360-1024)}, v14
    v_add_u32 v17, {3*(15360-1024)}, v14
    s_lshl_b32 s30, s26, 12
    s_mov_b32 s31, 0
K1_ld_loop:
    s_cmp_lt_u32 s31, 3
    s_cbranch_scc1 K1_ld_issue
    s_waitcnt vmcnt(16)
    s_barrier
K1_ld_issue:
    s_lshl_b32 s28, s27, 7
    s_mul_i32 s29, s27, {64*3840}
    s_mov_b32 m0, s30
    s_add_u32 s27, s27, 1""")
    for j in range(4):
        a(f"buffer_load_dwordx4 v{10+j}, s[8:11], s28 offen offset:{j*1024} lds")
    a(f"""s_add_u32 m0, s30, {WOFF}
    s_cmp_eq_u32 s27, 10""")
    for j in range(4):
        a(f"buffer_load_dwordx4 v{14+j}, s[12:15], s29 offen offset:{j*1024} lds")
    a(f"""s_cselect_b32 s27, 0, s27
    s_add_u32 s30, s30, {SLOT}
    s_and_b32 s30, s30, {4*SLOT-1}
    s_add_u32 s31, s31, 1
    s_cmp_lt_u32 s31, 10
    s_cbranch_scc1 K1_ld_loop
    s_waitcnt vmcnt(16)
    s_barrier
    s_waitcnt vmcnt(8)
    s_barrier
    s_waitcnt vmcnt(0)
    s_barrier""")
    stamp_end(a, 0, 16, 2, 3)
    a("s_endpgm")
    a(f"""K1_spare:
    s_cmp_ge_u32 s20, 2
    s_cbranch_scc1 K1_exit
    v_lshlrev_b32 v1, 4, v0
    s_lshl_b32 s26, s21, 11
    s_lshl_b32 s27, s20, 10
    s_add_u32 s26, s26, s27
    s_add_u32 s26, s26, {ST}
    v_mov_b32 v4, 0
    v_mov_b32 v5, 0
    v_mov_b32 v6, 0
    v_mov_b32 v7, 0
    buffer_store_dwordx4 v[4:7], v1, s[16:19], s26 offen
K1_exit:
    s_endpgm""")
    a(f"""K1_consumer:
    s_lshr_b32 s26, s20, 1             ; tw
    s_and_b32 s27, s20, 1              ; fw
    v_and_b32 v17, 31, v0              ; n
    v_lshrrev_b32 v18, 5, v0           ; hh
    v_bfe_u32 v19, v0, 1, 3            ; (n>>1)&7
    v_xor_b32 v19, v19, v18
    v_lshlrev_b32 v19, 4, v19
    v_lshl_add_u32 v19, v17, 7, v19
    s_lshl_b32 s28, s20, 12            ; (2tw+fw)*4096
    v_add_u32 v2, s28, v19
    v_xor_b32 v3, 32, v2
    v_xor_b32 v4, 64, v2
    v_xor_b32 v5, 96, v2
    v_xor_b32 v6, 4096, v2
    v_xor_b32 v7, 4096, v3
    v_xor_b32 v8, 4096, v4
    v_xor_b32 v9, 4096, v5
    v_bfe_u32 v19, v0, 2, 2            ; r
    v_bfe_u32 v20, v0, 4, 1            ; mhalf
    v_and_b32 v21, 1, v0               ; c0
    v_bfe_u32 v22, v0, 1, 1            ; c1
    s_cmp_ge_u32 s22, 10
    s_cselect_b64 s[30:31], -1, 0
    v_cndmask_b32 v23, v21, v22, s[30:31]
    v_cndmask_b32 v62, v22, v21, s[30:31]
    v_lshl_add_u32 v23, v20, 1, v23
    s_lshl_b32 s28, s27, 1
    s_add_u32 s28, s28, s26
    v_xor_b32 v63, s28, v19
    v_lshl_add_u32 v23, v63, 2, v23           ; slot
    v_lshlrev_b32 v23, 4, v23
    v_lshl_add_u32 v23, v62, 3, v23
    v_lshl_add_u32 v19, v18, 3, v19           ; 8hh + r
    v_lshl_add_u32 v23, v19, 8, v23
    v_add_u32 v10, {WOFF}, v23
    v_xor_b32 v11, 64, v10
    ; smfmac constants: row=l%16 -> fr=row>>2, par=(row>>1)&1, pp=row&1 ; on if row<8 && (l>>5)==fr && (reg>>1)==par
    v_bfe_u32 v19, v0, 2, 2            ; row>>2 (0..3)
    v_cmp_eq_u32 vcc, v19, v18
    v_mov_b32 v20, 0x3f803f80
    v_cndmask_b32 v20, 0, v20, vcc
    v_cmp_eq_u32 vcc, 0, v22
    v_mov_b32 v16, 0xeeee
    v_mov_b32 v19, 0x4444
    v_cndmask_b32 v12, 0, v20, vcc
    v_cndmask_b32 v14, v20, 0, vcc
    v_cmp_eq_u32 vcc, 0, v21
    v_mov_b32 v13, v12
    v_mov_b32 v15, v14
    v_cndmask_b32 v16, v16, v19, vcc""")
    for i in range(56, 62): a(f"v_mov_b32 v{i}, 0")
    for i in range(64, 128): a(f"v_mov_b32 v{i}, 0")
    def reads(p, ks):
        b = 24 + 16*p
        return [f"ds_read_b128 v[{b}:{b+3}], v{2+ks}",
                f"ds_read_b64_tr_b16 v[{b+4}:{b+5}], v10 offset:{ks*4096}",
                f"ds_read_b64_tr_b16 v[{b+6}:{b+7}], v10 offset:{ks*4096+1024}",
                f"ds_read_b128 v[{b+8}:{b+11}], v{6+ks}",
                f"ds_read_b64_tr_b16 v[{b+12}:{b+13}], v11 offset:{ks*4096}",
                f"ds_read_b64_tr_b16 v[{b+14}:{b+15}], v11 offset:{ks*4096+1024}"]
    a(f"s_mov_b32 s29, 0\ns_mov_b32 s32, {SLOT}\ns_mov_b32 s33, 0xffff0000\ns_barrier")
    stamp_mid(a)
    for r in reads(0, 0): a(r)
    a("s_cmp_ge_u32 s22, 10\ns_cbranch_scc1 K1_loopV")
    for vt in (0, 1):
        L = "K1_loopV" if vt else "K1_loopQ"
        a(f".p2align 3\n{L}:")
        for ks in range(4):
            p = ks & 1; b = 24 + 16*p
            X = [f"v[{b}:{b+3}]", f"v[{b+8}:{b+11}]"]; W = [f"v[{b+4}:{b+7}]", f"v[{b+12}:{b+15}]"]
            a("s_waitcnt lgkmcnt(0)")
            upd = []
            if ks == 3:
                a(f"""s_add_u32 s29, s29, 1
                s_and_b32 s28, s29, 3
                s_cselect_b32 s28, s32, {(-3*SLOT) & 0xffffffff}
                s_barrier
                v_add_u32 v2, s28, v2
                v_add_u32 v10, s28, v10
                v_add_u32 v6, s28, v6
                v_add_u32 v11, s28, v11""")
                upd = [f"v_add_u32 v{i}, s28, v{i}" for i in (3, 7, 4, 8, 5, 9)]
            rd = reads(1 - p, (ks + 1) & 3)
            sq = []
            for i in range(4):
                sq += [f"v_lshlrev_b32 v62, 16, v{b+i}", f"v_and_b32 v63, s33, v{b+i}", "v_fmac_f32 v60, v62, v62", "v_fmac_f32 v61, v63, v63"]
            mf = []
            for (aa, bb) in ((0, 0), (0, 1), (1, 1), (1, 0)):
                acc = 64 + 16*(2*aa + bb)
                o = (X[aa], W[bb]) if vt else (W[bb], X[aa])
                mf.append(f"v_mfma_f32_32x32x16_bf16 v[{acc}:{acc+15}], {o[0]}, {o[1]}, v[{acc}:{acc+15}]")
            a(mf[0]); a(rd[0]); a(rd[1]); a(rd[2])
            for s in sq[0:4]: a(s)
            a(mf[1]); a(rd[3]); a(rd[4]); a(rd[5])
            for s in sq[4:8]: a(s)
            a(mf[2])
            for s in sq[8:12] + upd[0:2]: a(s)
            a(mf[3])
            for s in sq[12:16] + upd[2:4]: a(s)
            a(f"v_smfmac_f32_16x16x64_bf16 v[56:59], v[12:15], v[{b}:{b+7}], v16")
            for s in upd[4:6]: a(s)
        a(f"s_cmp_lt_u32 s29, 10\ns_cbranch_scc1 {L}")
        if not vt: a("s_branch K1_epi")
    qscale = 1.4426950408889634 * (20 ** -0.5)
    a(f"""K1_epi:
    v_add_f32 v60, v60, v61
    v_mov_b32 v61, v60
    s_cmp_lt_u32 s22, 5
    s_cselect_b32 s34, {hx(qscale)}, 1.0
    v_permlane32_swap_b32 v60, v61
    v_add_f32 v60, v60, v61            ; sumsq (all lanes: token l%32)
    v_add_f32 v56, v56, v57
    v_add_f32 v58, v58, v59
    v_permlane16_swap_b32 v56, v58
    v_mul_f32 v56, {hx(1.0/640)}, v56  ; mean
    v_mul_f32 v60, {hx(1.0/640)}, v60
    v_fma_f32 v60, -v56, v56, v60      ; var
    v_max_f32 v60, 0, v60
    v_add_f32 v60, {hx(1e-5)}, v60
    v_rsq_f32 v60, v60
    v_mul_f32 v60, s34, v60            ; A
    v_mul_f32 v61, -v56, v60
    s_lshl_b32 s28, s20, 7
    s_add_u32 s28, s28, {STAB}
    v_lshl_add_u32 v62, v17, 2, s28
    s_lshl_b32 s30, s27, 1
    s_add_u32 s30, s30, s26
    s_lshl_b32 s31, s30, 7
    s_add_u32 s31, s31, {STAB}
    v_lshl_add_u32 v63, v17, 2, s31
    s_waitcnt lgkmcnt(0)
    s_mov_b32 exec_hi, 0
    ds_write_b32 v62, v60
    ds_write_b32 v62, v61 offset:512
    ds_write_b32 v63, v58 offset:1024
    s_mov_b64 exec, -1
    ; T values
    s_lshl_b32 s35, s21, 2
    s_add_u32 s35, s35, s20            ; T for a'=0
    s_xor_b32 s36, s35, 1              ; T for a'=1
    s_cmp_ge_u32 s22, 10
    s_cbranch_scc1 K1_epiV""")
    a(f"""s_mul_i32 s35, s35, 2560
    s_mul_i32 s36, s36, 2560
    s_cmp_ge_u32 s22, 5
    s_cselect_b32 s37, 5, 0
    s_cselect_b32 s38, {KB}, {QB}
    s_cselect_b64 s[40:41], -1, 0
    s_sub_u32 s37, s22, s37            ; cgl
    s_add_u32 s35, s35, s38
    s_add_u32 s36, s36, s38
    ; m = K ? swap23(n) : n
    v_and_b32 v19, 0x13, v17
    v_bfe_u32 v20, v17, 2, 1
    v_bfe_u32 v21, v17, 3, 1
    v_lshl_add_u32 v19, v20, 3, v19
    v_lshl_add_u32 v19, v21, 2, v19
    v_cndmask_b32 v19, v17, v19, s[40:41]
    v_lshlrev_b32 v19, 4, v19          ; m*16
    s_lshl_b32 s37, s37, 4""")
    for bb in range(2):
        for half in range(2):
            d = 2 + 2*bb + half
            a(f"""s_xor_b32 s39, s30, {bb}
            s_lshl_b32 s39, s39, 2
            s_add_u32 s39, s39, s37
            s_add_u32 s39, s39, {2*half}
            v_add_u32 v20, s39, v18            ; U
            v_mul_u32_u24 v21, 205, v20
            v_lshrrev_b32 v21, 10, v21         ; hp = U/5
            v_mul_u32_u24 v22, {163840 - 5*512}, v21
            v_lshl_add_u32 v22, v20, 9, v22
            v_add_u32 v{d}, v22, v19""")
    a(f"""v_xor_b32 v6, 128, v62
    v_lshl_add_u32 v7, v18, 4, s31
    v_xor_b32 v8, 128, v7
    s_waitcnt lgkmcnt(0)
    s_barrier
    ds_read_b32 v10, v62
    ds_read_b32 v12, v62 offset:512
    ds_read_b32 v14, v6
    ds_read_b32 v16, v6 offset:512""")
    for bb in range(2):
        for g in range(4):
            a(f"ds_read_b128 v[{24+16*bb+4*g}:{27+16*bb+4*g}], v{7+bb} offset:{1024+32*g}")
    a("s_waitcnt lgkmcnt(0)")
    for aa in range(2):
        for bb in range(2):
            acc = 64 + 16*(2*aa + bb)
            A = 10 + 4*aa; B = 12 + 4*aa
            for half in range(2):
                for i in range(4):
                    r = 8*half + 2*i
                    a(f"v_pk_mul_f32 v[{acc+r}:{acc+r+1}], v[{acc+r}:{acc+r+1}], v[{A}:{A+1}] op_sel_hi:[1,0]")
                for i in range(4):
                    r = 8*half + 2*i
                    a(f"v_pk_fma_f32 v[{acc+r}:{acc+r+1}], v[{24+16*bb+r}:{25+16*bb+r}], v[{B}:{B+1}], v[{acc+r}:{acc+r+1}] op_sel_hi:[1,0,1]")
                for i in range(4):
                    r = 8*half + 2*i
                    a(f"v_cvt_pk_bf16_f32 v{acc+8*half+i}, v{acc+r}, v{acc+r+1}")
                a(f"buffer_store_dwordx4 v[{acc+8*half}:{acc+8*half+3}], v{2+2*bb+half}, s[16:19], s{35+aa} offen")
    stamp_end(a, 0, 16, 2, 3)
    a("s_endpgm")
    a(f"""K1_epiV:
    s_mul_i32 s35, s35, 1280
    s_mul_i32 s36, s36, 1280
    s_add_u32 s35, s35, {VB}
    s_add_u32 s36, s36, {VB}
    s_sub_u32 s37, s22, 10
    s_lshl_b32 s37, s37, 7
    v_mul_u32_u24 v19, 320, v18""")
    for bb in range(2):
        a(f"""s_xor_b32 s39, s30, {bb}
        s_lshl_b32 s39, s39, 5
        s_add_u32 s39, s39, s37
        v_add_u32 v20, s39, v17            ; col
        v_mul_u32_u24 v21, 3277, v20
        v_lshrrev_b32 v21, 16, v21
        v_mul_u32_u24 v22, {81920 - 320}, v21
        v_lshl_add_u32 v22, v20, 4, v22
        v_add_u32 v{2+bb}, v22, v19""")
    a(f"""v_xor_b32 v6, 128, v63
    v_lshl_add_u32 v7, v18, 4, s28
    v_xor_b32 v8, 128, v7
    s_waitcnt lgkmcnt(0)
    s_barrier
    ds_read_b32 v10, v63 offset:1024
    ds_read_b32 v12, v6 offset:1024""")
    for aa in range(2):
        for g in range(4):
            a(f"ds_read_b128 v[{24+4*g}:{27+4*g}], v{7+aa} offset:{32*g}")
            a(f"ds_read_b128 v[{40+4*g}:{43+4*g}], v{7+aa} offset:{512+32*g}")
        a("s_waitcnt lgkmcnt(0)")
        for bb in range(2):
            acc = 64 + 16*(2*aa + bb)
            C = 10 + 2*bb
            for half in range(2):
                for i in range(4):
                    r = 8*half + 2*i
                    a(f"v_pk_mul_f32 v[{acc+r}:{acc+r+1}], v[{acc+r}:{acc+r+1}], v[{24+r}:{25+r}]")
                for i in range(4):
                    r = 8*half + 2*i
                    a(f"v_pk_fma_f32 v[{acc+r}:{acc+r+1}], v[{40+r}:{41+r}], v[{C}:{C+1}], v[{acc+r}:{acc+r+1}] op_sel_hi:[1,0,1]")
                for i in range(4):
                    r = 8*half + 2*i
                    a(f"v_cvt_pk_bf16_f32 v{acc+8*half+i}, v{acc+r}, v{acc+r+1}")
                a(f"buffer_store_dwordx4 v[{acc+8*half}:{acc+8*half+3}], v{2+bb}, s[16:19], s{35+aa} offen offset:{640*half}")
    stamp_end(a, 0, 16, 2, 3)
    a("s_endpgm")
    return dict(name="k1_kernel", lines=a.lines, vgpr=128, grid=256, block=512, lds=STAB + 2048)

def k2():
    a = Asm()
    SLOT = 22528; NSLOT = 4; VOFF = 12288
    S = [0+16, 32+16]
    O = 80
    QM = 96; QT = 100
    KM = [104, 112]
    KT = [102, 120]
    V = [124, 140]
    AKM, AKT, AV, IDX = 2, 3, 4, 5
    D0 = 6
    stamp_begin(a)
    a(f"""s_cmp_ge_u32 s2, 256
    s_cbranch_scc1 K2_exit
    s_load_dwordx2 s[24:25], s[0:1], 80
    v_lshrrev_b32 v1, 6, v0
    v_and_b32 v0, 63, v0
    s_and_b32 s21, s2, 7
    v_readfirstlane_b32 s20, v1
    s_lshl_b32 s21, s21, 2
    s_bfe_u32 s22, s2, 0x20003
    s_add_u32 s21, s21, s22            ; head
    s_lshr_b32 s22, s2, 5              ; qb
    s_lshr_b32 s23, s21, 1             ; hp
    s_and_b32 s26, s21, 1              ; odd
    s_mul_i32 s27, s23, 163840
    s_lshl_b32 s28, s26, 10
    s_add_u32 s28, s28, s27
    s_add_u32 s28, s28, {KB}
    s_mul_i32 s29, s21, 81920
    s_add_u32 s29, s29, {VB}
    v_lshlrev_b32 v9, 4, v0            ; lane*16""")
    a(f"""s_lshl_b32 s30, s20, 10
    v_add_u32 v10, s30, v9             ; b = 1024*i0 + 16*l
    v_lshrrev_b32 v11, 9, v10
    v_mul_u32_u24 v11, 43, v11
    v_lshrrev_b32 v11, 7, v11          ; tile = b/1536
    v_lshl_add_u32 v{D0}, v11, 10, v10
    v_add_u32 v10, 8192, v10
    v_lshrrev_b32 v11, 9, v10
    v_mul_u32_u24 v11, 43, v11
    v_lshrrev_b32 v11, 7, v11
    v_lshl_add_u32 v11, v11, 10, v10
    v_subrev_u32 v12, {VOFF}, v10
    s_movk_i32 s38, 10240
    s_cmp_lt_u32 s20, 4
    s_cselect_b64 s[32:33], -1, 0
    s_cselect_b32 s35, s28, s29        ; soffset i1
    s_cselect_b32 s38, 20480, s38      ; stride i1
    v_cndmask_b32 v{D0+1}, v12, v11, s[32:33]
    s_add_u32 s31, s20, 16
    s_min_u32 s31, s31, 21
    s_lshl_b32 s31, s31, 10
    s_sub_u32 s39, s31, {VOFF}
    v_add_u32 v{D0+2}, s39, v9
    s_mov_b32 s34, s28                 ; soffset i0
    s_mov_b32 s36, s29                 ; soffset i2
    s_mov_b32 s37, 0
    s_waitcnt lgkmcnt(0)""")
    srd(a, 16, 24, WS_SIZE)
    def dma():
        a(f"""s_add_u32 m0, s37, s30
        s_add_u32 s39, s37, s31
        buffer_load_dwordx4 v{D0}, s[16:19], s34 offen lds
        s_add_u32 m0, m0, 8192
        s_add_u32 s34, s34, 20480
        buffer_load_dwordx4 v{D0+1}, s[16:19], s35 offen lds
        s_mov_b32 m0, s39
        s_add_u32 s35, s35, s38
        buffer_load_dwordx4 v{D0+2}, s[16:19], s36 offen lds
        s_add_u32 s36, s36, 10240
        s_add_u32 s37, s37, {SLOT}
        s_cmp_eq_u32 s37, {SLOT*NSLOT}
        s_cselect_b32 s37, 0, s37""")
    dma()
    a(f"""s_lshl_b32 s40, s22, 3
    s_add_u32 s40, s40, s20            ; T
    s_mul_i32 s41, s40, 2560
    s_add_u32 s41, s41, s27            ; QB=0
    s_mul_i32 s42, s26, 1536
    s_add_u32 s42, s42, s41
    buffer_load_dwordx4 v[{QM}:{QM+3}], v9, s[16:19], s42 offen
    v_and_b32 v10, 31, v0
    v_lshlrev_b32 v11, 4, v10
    s_lshl_b32 s42, s26, 3
    s_add_u32 s42, s42, s41
    buffer_load_dwordx2 v[{QT}:{QT+1}], v11, s[16:19], s42 offen offset:1024""")
    dma(); dma()
    a(f"""; LDS read addresses
    s_lshl_b32 s42, s26, 9
    v_add_u32 v{AKM}, s42, v9
    v_lshrrev_b32 v12, 5, v0
    v_mul_u32_u24 v13, 1536, v12
    s_xor_b32 s42, s26, 1
    s_lshl_b32 s42, s42, 10
    s_lshl_b32 s43, s26, 3
    s_add_u32 s42, s42, s43
    v_add3_u32 v{AKT}, v13, v11, s42
    v_mul_u32_u24 v13, 320, v12
    s_movk_i32 s42, {VOFF}
    v_add3_u32 v{AV}, v13, v11, s42
    v_mov_b32 v{IDX}, 0xdddddddd
    s_mov_b32 s44, 0x000fffff
    s_mov_b32 s45, 0x000fffff""")
    for i in range(16):
        a(f"v_mov_b32 v{O+i}, 0")
        a(f"v_mov_b32 v{V[0]+i}, 0x3f803f80")
        a(f"v_mov_b32 v{V[1]+i}, 0x3f803f80")
    for i in range(8): a(f"v_mov_b32 v{S[1]+24+i}, 0")
    def rdK(buf, pl):
        return [f"ds_read_b64 v[{KT[buf]}:{KT[buf]+1}], v{AKT} offset:{pl*3072}",
                f"ds_read_b128 v[{KM[buf]}:{KM[buf]+3}], v{AKM} offset:{pl*3072}",
                f"ds_read_b128 v[{KM[buf]+4}:{KM[buf]+7}], v{AKM} offset:{pl*3072+1536}"]
    def rdV(buf, pl):
        return ["s_mov_b64 exec, s[44:45]"] + [f"ds_read_b128 v[{V[buf]+4*i}:{V[buf]+4*i+3}], v{AV} offset:{pl*2560+640*i}" for i in range(4)] + ["s_mov_b64 exec, -1"]
    def m2b(buf, kb): return f"v_mfma_f32_32x32x4_2b_bf16 v[{S[buf]}:{S[buf]+31}], v[{KT[kb]}:{KT[kb]+1}], v[{QT}:{QT+1}], 0"
    def m16(buf, kb, t): return f"v_mfma_f32_32x32x16_bf16 v[{S[buf]+16*t}:{S[buf]+16*t+15}], v[{KM[kb]+4*t}:{KM[kb]+4*t+3}], v[{QM}:{QM+3}], v[{S[buf]+16*t}:{S[buf]+16*t+15}]"
    def pv(buf, vb, i): return f"v_smfmac_f32_32x32x32_bf16 v[{O}:{O+15}], v[{V[vb]+4*i}:{V[vb]+4*i+3}], v[{S[buf]+8*i}:{S[buf]+8*i+7}], v{IDX}"
    def ex(buf, lo, hi):
        for i in range(lo, hi): a(f"v_exp_f32 v{S[buf]+i}, v{S[buf]+i}")
    a("s_waitcnt vmcnt(6)\ns_barrier")
    stamp_mid(a)
    if STAMP: a("s_waitcnt lgkmcnt(0)")
    for r in rdK(0, 0): a(r)
    for r in rdK(1, 1): a(r)
    for r in rdV(0, 0): a(r)
    a("s_waitcnt lgkmcnt(7)")
    a(m2b(0, 0)); a(m16(0, 0, 0)); a(m16(0, 0, 1))
    a(f"s_mov_b32 s46, 0\ns_mov_b32 s47, 0\ns_movk_i32 s49, {SLOT}\ns_nop 7")
    a(".p2align 3\nK2_loop:")
    for it in range(4):
        c = it & 1; n = 1 - c
        ex(c, 0, 2)
        a(pv(n, n, 3))
        a("s_waitcnt lgkmcnt(0)")
        if it == 2:
            a(f"""s_add_u32 s46, s46, 1
            s_add_u32 s47, s47, {SLOT}
            s_cmp_eq_u32 s47, {SLOT*NSLOT}
            s_cselect_b32 s47, 0, s47
            s_cselect_b32 s48, {(-(NSLOT-1)*SLOT) & 0xffffffff}, s49
            s_waitcnt vmcnt(3)
            s_barrier
            v_add_u32 v{AKM}, s48, v{AKM}
            v_add_u32 v{AKT}, s48, v{AKT}""")
        if it == 3:
            a(f"v_add_u32 v{AV}, s48, v{AV}")
        for r in rdK(c, (it + 2) & 3): a(r)
        for r in rdV(n, (it + 1) & 3): a(r)
        ex(c, 2, 6)
        a(m2b(n, n))
        ex(c, 6, 14)
        a(pv(c, c, 0))
        if it == 2: dma()
        ex(c, 14, 18)
        a(pv(c, c, 1))
        ex(c, 18, 22)
        a(m16(n, n, 0))
        ex(c, 22, 26)
        a(m16(n, n, 1))
        ex(c, 26, 30)
        a(pv(c, c, 2))
        ex(c, 30, 32)
    a("s_cmp_lt_u32 s46, 8\ns_cbranch_scc1 K2_loop")
    a(pv(1, 1, 3))
    a(f"""s_mul_i32 s42, s21, 81920
    s_mul_i32 s43, s40, 1280
    s_add_u32 s42, s42, s43
    s_add_u32 s42, s42, {OB}
    v_lshlrev_b32 v11, 3, v10
    s_mov_b32 s48, {hx(2.0**-90)}
    s_mov_b32 s49, {hx(2.0**90)}
    v_cmp_nle_f32 vcc, s48, v{O+12}
    v_cmp_nge_f32 s[50:51], s49, v{O+12}
    s_or_b64 vcc, vcc, s[50:51]
    s_cbranch_vccnz K2_fallback
K2_fin:
    v_rcp_f32 v12, v{O+12}""")
    for i in range(6):
        a(f"v_pk_mul_f32 v[{O+2*i}:{O+2*i+1}], v[{O+2*i}:{O+2*i+1}], v[12:13] op_sel_hi:[1,0]")
    for i in range(6):
        a(f"v_cvt_pk_bf16_f32 v{O+i}, v{O+2*i}, v{O+2*i+1}")
    a(f"""buffer_store_dwordx4 v[{O}:{O+3}], v9, s[16:19], s42 offen
    s_mov_b32 exec_hi, 0
    buffer_store_dwordx2 v[{O+4}:{O+5}], v11, s[16:19], s42 offen offset:1024""")
    stamp_end(a, 1, 16, 2, 3)
    a("K2_exit:\ns_endpgm")
    MX = 14
    a(f"""K2_fallback:
    s_waitcnt vmcnt(0) lgkmcnt(0)
    s_lshl_b32 s43, s26, 9
    v_add_u32 v{AKM}, s43, v9
    v_lshrrev_b32 v12, 5, v0
    v_mul_u32_u24 v13, 2560, v12
    v_lshlrev_b32 v15, 4, v10
    s_xor_b32 s43, s26, 1
    s_lshl_b32 s43, s43, 10
    s_lshl_b32 s46, s26, 3
    s_add_u32 s43, s43, s46
    v_add3_u32 v{AKT}, v13, v15, s43
    v_mul_u32_u24 v13, 320, v12
    v_add_u32 v{AV}, v13, v15
    v_mov_b32 v{MX}, 0xff800000
    s_mov_b32 s46, 0
    s_mov_b32 s47, s28
K2_fb_max:
    buffer_load_dwordx2 v[{KT[0]}:{KT[0]+1}], v{AKT}, s[16:19], s47 offen
    buffer_load_dwordx4 v[{KM[0]}:{KM[0]+3}], v{AKM}, s[16:19], s47 offen
    buffer_load_dwordx4 v[{KM[0]+4}:{KM[0]+7}], v{AKM}, s[16:19], s47 offen offset:2560
    s_waitcnt vmcnt(0)""")
    a(m2b(0, 0)); a(m16(0, 0, 0)); a(m16(0, 0, 1))
    for i in range(16): a(f"v_max3_f32 v{MX}, v{MX}, v{S[0]+2*i}, v{S[0]+2*i+1}")
    a(f"""s_add_u32 s47, s47, 5120
    s_add_u32 s46, s46, 1
    s_cmp_lt_u32 s46, 32
    s_cbranch_scc1 K2_fb_max
    v_mov_b32 v15, v{MX}
    v_permlane32_swap_b32 v15, v{MX}
    v_max_f32 v{MX}, v15, v{MX}""")
    for i in range(16): a(f"v_mov_b32 v{O+i}, 0")
    a(f"""s_mov_b32 s46, 0
    s_mov_b32 s47, s28
    s_mov_b32 s48, s29
K2_fb_pv:
    buffer_load_dwordx2 v[{KT[0]}:{KT[0]+1}], v{AKT}, s[16:19], s47 offen
    buffer_load_dwordx4 v[{KM[0]}:{KM[0]+3}], v{AKM}, s[16:19], s47 offen
    buffer_load_dwordx4 v[{KM[0]+4}:{KM[0]+7}], v{AKM}, s[16:19], s47 offen offset:2560
    s_mov_b64 exec, s[44:45]""")
    for i in range(4): a(f"buffer_load_dwordx4 v[{V[0]+4*i}:{V[0]+4*i+3}], v{AV}, s[16:19], s48 offen offset:{640*i}")
    a("s_mov_b64 exec, -1\ns_waitcnt vmcnt(0)")
    a(m2b(0, 0)); a(m16(0, 0, 0)); a(m16(0, 0, 1))
    for i in range(32): a(f"v_sub_f32 v{S[0]+i}, v{S[0]+i}, v{MX}")
    ex(0, 0, 32)
    for i in range(4): a(pv(0, 0, i))
    a(f"""s_add_u32 s47, s47, 5120
    s_add_u32 s48, s48, 2560
    s_add_u32 s46, s46, 1
    s_cmp_lt_u32 s46, 32
    s_cbranch_scc1 K2_fb_pv
    s_nop 7
    s_branch K2_fin""")
    return dict(name="k2_kernel", lines=a.lines, vgpr=160, grid=256, block=512, lds=SLOT*NSLOT)

def k3():
    a = Asm()
    RED = 106496
    stamp_begin(a)
    a(f"""s_cmp_ge_u32 s2, 256
    s_cbranch_scc1 K3_exit
    s_load_dwordx2 s[4:5], s[0:1], 0
    s_load_dwordx2 s[6:7], s[0:1], 16
    s_load_dwordx2 s[28:29], s[0:1], 32
    s_load_dwordx2 s[24:25], s[0:1], 80
    v_lshrrev_b32 v1, 6, v0
    v_and_b32 v0, 63, v0
    s_and_b32 s21, s2, 7
    v_readfirstlane_b32 s20, v1
    s_lshl_b32 s21, s21, 2
    s_bfe_u32 s22, s2, 0x20003
    s_add_u32 s21, s21, s22
    s_lshr_b32 s22, s2, 5              ; cg (0..7)
    s_and_b32 s26, s20, 3              ; mt
    s_lshr_b32 s27, s20, 2             ; kh
    s_lshl_b32 s30, s20, 6
    v_add_u32 v1, s30, v0              ; U0 = 64*w + l
    s_mul_i32 s31, s22, 160""")
    for j in range(5):
        a(f"""v_add_u32 v2, {512*j}, v1
        v_mul_u32_u24 v3, 6554, v2
        v_lshrrev_b32 v3, 16, v3           ; row = U/10
        v_mul_u32_u24 v4, {1280-160}, v3
        v_lshl_add_u32 v4, v2, 4, v4
        v_add_u32 v{10+j}, s31, v4""")
    a("s_waitcnt lgkmcnt(0)")
    srd(a, 8, 4, 2621440); srd(a, 12, 6, 819200); srd(a, 16, 24, WS_SIZE); srd(a, 32, 28, 1280)
    a(f"""v_and_b32 v5, 15, v0               ; tok
    v_lshrrev_b32 v6, 4, v0            ; kg / g
    s_lshl_b32 s36, s21, 1
    s_lshr_b32 s37, s26, 1
    s_add_u32 s36, s36, s37            ; T
    s_mul_i32 s36, s36, 1280
    s_mul_i32 s37, s27, {16*81920}
    s_add_u32 s36, s36, s37
    s_add_u32 s36, s36, {OB}
    s_and_b32 s37, s26, 1
    s_lshl_b32 s37, s37, 4
    v_add_u32 v7, s37, v5
    v_lshrrev_b32 v2, 1, v6
    v_mul_u32_u24 v2, 81920, v2
    v_and_b32 v3, 1, v6
    v_lshl_add_u32 v2, v3, 9, v2
    v_lshl_add_u32 v8, v7, 4, v2
    v_mul_u32_u24 v2, {2*81920}, v6
    v_lshl_add_u32 v9, v7, 3, v2
    s_lshl_b32 s38, s20, 10
    s_mov_b32 m0, s38
    s_mov_b32 s39, 0""")
    OF = 24
    def odma(j):
        a(f"buffer_load_dwordx4 v{10 + j%5}, s[12:15], s39 offen lds")
        a(f"s_add_u32 m0, m0, 8192")
        if j % 5 == 4: a(f"s_add_u32 s39, s39, {256*1280}")
        else: a("s_nop 0")
    for j in range(13): odma(j)
    a("s_mov_b32 s40, s36")
    for s in range(8):
        a(f"buffer_load_dwordx4 v[{OF+4*s}:{OF+4*s+3}], v8, s[16:19], s40 offen")
        a(f"s_add_u32 s40, s40, {2*81920}")
    for s in range(2):
        for t in range(2):
            a(f"s_add_u32 s40, s36, {(8*s+t)*81920}")
            a(f"buffer_load_dwordx2 v[{OF+32+4*s+2*t}:{OF+33+4*s+2*t}], v9, s[16:19], s40 offen offset:1024")
    XR = 64; WR = 74
    a(f"""s_lshl_b32 s41, s21, 6
    s_lshl_b32 s42, s26, 4
    s_add_u32 s41, s41, s42
    v_add_u32 v15, s41, v5             ; token
    v_mul_u32_u24 v16, 1280, v15
    v_mul_u32_u24 v17, 40, v6
    v_add_u32 v17, s31, v17
    v_add_u32 v16, v16, v17""")
    for j in range(5):
        a(f"buffer_load_dwordx2 v[{XR+2*j}:{XR+2*j+1}], v16, s[8:11], 0 offen offset:{8*j}")
    for j in range(5):
        a(f"buffer_load_dwordx2 v[{WR+2*j}:{WR+2*j+1}], v17, s[32:35], 0 offen offset:{8*j}")
    a(f"""v_bfe_u32 v2, v0, 2, 2             ; r
    v_and_b32 v3, 3, v0                ; c
    v_mul_u32_u24 v3, 40, v3
    v_lshrrev_b32 v4, 1, v6
    v_mul_u32_u24 v4, 20, v4
    v_and_b32 v18, 1, v6
    v_lshl_add_u32 v4, v18, 2, v4
    v_add_u32 v4, v4, v2
    s_mul_i32 s42, s27, 320
    v_add_u32 v4, s42, v4
    v_mul_u32_u24 v4, 160, v4
    v_add_u32 v18, v4, v3
    v_mul_u32_u24 v4, 40, v6
    v_add3_u32 v4, v4, v2, s42
    v_add_u32 v4, 16, v4
    v_mul_u32_u24 v4, 160, v4
    v_add_u32 v19, v4, v3""")
    ACC = 84
    for i in range(20): a(f"v_mov_b32 v{ACC+i}, 0")
    WF = [104, 124]
    def rdW(buf, s):
        out = []
        for j in range(5):
            for t in range(2):
                if s < 8: out.append(f"ds_read_b64_tr_b16 v[{WF[buf]+4*j+2*t}:{WF[buf]+4*j+2*t+1}], v18 offset:{6400*s+1280*t+8*j}")
                else: out.append(f"ds_read_b64_tr_b16 v[{WF[buf]+4*j+2*t}:{WF[buf]+4*j+2*t+1}], v19 offset:{25600*(s-8)+3200*t+8*j}")
        return out
    a("s_waitcnt vmcnt(22)\ns_barrier")
    stamp_mid(a)
    if STAMP: a("s_waitcnt lgkmcnt(0)")
    for r in rdW(0, 0): a(r)
    for s in range(10):
        nO = 12 - (s + 1 if s < 8 else 8 + 2*(s - 7))
        if s < 9:
            for r in rdW((s + 1) & 1, s + 1): a(r)
            a(f"s_waitcnt vmcnt({10 + nO}) lgkmcnt(10)")
        else:
            a(f"s_waitcnt vmcnt({10 + nO}) lgkmcnt(0)")
        for j in range(5):
            a(f"v_mfma_f32_16x16x32_bf16 v[{ACC+4*j}:{ACC+4*j+3}], v[{WF[s&1]+4*j}:{WF[s&1]+4*j+3}], v[{OF+4*s}:{OF+4*s+3}], v[{ACC+4*j}:{ACC+4*j+3}]")
    a(f"""s_mul_i32 s42, s26, 5120
    s_add_u32 s42, s42, {RED}
    v_lshl_add_u32 v2, v0, 4, s42
    s_cmp_eq_u32 s27, 0
    s_cbranch_scc1 K3_fin""")
    for j in range(5): a(f"ds_write_b128 v2, v[{ACC+4*j}:{ACC+4*j+3}] offset:{1024*j}")
    a("s_waitcnt lgkmcnt(0)\ns_barrier")
    stamp_end(a, 2, 16, 2, 3)
    a("s_endpgm\nK3_fin:\ns_barrier")
    for j in range(5): a(f"ds_read_b128 v[{24+4*j}:{27+4*j}], v2 offset:{1024*j}")
    a("s_mov_b32 s33, 0xffff0000\nv_mov_b32 v20, 0\nv_mov_b32 v21, 0\nv_mov_b32 v22, 0\ns_waitcnt vmcnt(0) lgkmcnt(0)")
    for j in range(5):
        for i in range(2):
            r = ACC + 4*j + 2*i; xr = XR + 2*j + i; wr = WR + 2*j + i
            a(f"""v_pk_add_f32 v[{r}:{r+1}], v[{r}:{r+1}], v[{24+4*j+2*i}:{25+4*j+2*i}]
            v_lshlrev_b32 v44, 16, v{xr}
            v_and_b32 v45, s33, v{xr}
            v_pk_add_f32 v[{r}:{r+1}], v[{r}:{r+1}], v[44:45]
            v_cvt_pk_bf16_f32 v{xr}, v{r}, v{r+1}
            v_lshlrev_b32 v46, 16, v{wr}
            v_and_b32 v47, s33, v{wr}
            v_lshlrev_b32 v44, 16, v{xr}
            v_and_b32 v45, s33, v{xr}
            v_add_f32 v20, v20, v44
            v_fmac_f32 v21, v44, v44
            v_fmac_f32 v22, v44, v46
            v_add_f32 v20, v20, v45
            v_fmac_f32 v21, v45, v45
            v_fmac_f32 v22, v45, v47""")
        a(f"s_mov_b32 s43, {HB}\nbuffer_store_dwordx2 v[{XR+2*j}:{XR+2*j+1}], v16, s[16:19], s43 offen offset:{8*j}")
    a(f"""v_mov_b32 v23, 0
    v_permlane32_swap_b32 v20, v22
    v_permlane32_swap_b32 v21, v23
    v_add_f32 v20, v20, v22
    v_add_f32 v21, v21, v23
    v_permlane16_swap_b32 v20, v21
    v_add_f32 v20, v20, v21            ; g0: s1, g1: s2, g2: s3, g3: 0
    v_lshlrev_b32 v2, 4, v15
    v_lshl_add_u32 v2, v6, 2, v2
    s_mov_b32 s43, {ST}
    buffer_atomic_add_f32 v20, v2, s[16:19], s43 offen""")
    stamp_end(a, 2, 16, 2, 3)
    a("K3_exit:\ns_endpgm")
    return dict(name="k3_kernel", lines=a.lines, vgpr=144, grid=256, block=512, lds=RED + 4*5120)

def k4():
    a = Asm()
    UPO = 10240 + 64; RED = 20800
    stamp_begin(a)
    a(f"""s_cmp_ge_u32 s2, 256
    s_cbranch_scc1 K4_exit
    s_load_dwordx2 s[28:29], s[0:1], 32
    s_load_dwordx4 s[4:7], s[0:1], 40
    s_load_dwordx2 s[26:27], s[0:1], 64
    s_load_dwordx2 s[24:25], s[0:1], 80
    v_lshrrev_b32 v1, 6, v0
    v_lshlrev_b32 v2, 4, v0            ; tid*16
    v_readfirstlane_b32 s20, v1
    v_and_b32 v1, 63, v0               ; lane
    s_waitcnt lgkmcnt(0)""")
    srd(a, 8, 4, 1966080); srd(a, 12, 6, 1966080); srd(a, 16, 24, WS_SIZE); srd(a, 32, 28, 1280); srd(a, 36, 26, 2621440)
    STR = 24
    a(f"s_mov_b32 s40, {ST}")
    for i in range(8):
        a(f"buffer_load_dwordx4 v[{STR+4*i}:{STR+4*i+3}], v2, s[16:19], s40 offen\ns_add_u32 s40, s40, 4096")
    a("v_lshlrev_b32 v3, 2, v1")
    for i in range(5): a(f"buffer_load_dword v{56+i}, v3, s[32:35], 0 offen offset:{256*i}")
    HR = 64; SR = 76
    a(f"s_mul_i32 s41, s2, 10240\ns_add_u32 s42, s41, {HB}\ns_lshl_b32 s43, s2, 7\ns_add_u32 s43, s43, {ST}")
    for i in range(3):
        a(f"""v_add_u32 v4, {256*i}, v0
        v_min_u32 v4, 639, v4
        v_lshlrev_b32 v{10+i}, 4, v4
        v_mul_u32_u24 v5, 820, v4
        v_lshrrev_b32 v{13+i}, 16, v5
        v_lshlrev_b32 v5, 4, v{13+i}
        buffer_load_dwordx4 v[{HR+4*i}:{HR+4*i+3}], v{10+i}, s[16:19], s42 offen
        buffer_load_dwordx2 v[{SR+2*i}:{SR+2*i+1}], v5, s[16:19], s43 offen""")
    a(f"""s_lshr_b32 s21, s2, 3
    s_and_b32 s22, s2, 7
    s_mul_i32 s22, s22, 24
    s_add_u32 s22, s22, s21            ; fs
    s_cmp_ge_u32 s21, 24
    s_cbranch_scc1 K4_nodma
    v_mul_u32_u24 v4, 3072, v1
    s_lshl_b32 s44, s22, 4
    s_and_b32 s45, s20, 1
    s_mul_i32 s46, s45, {5*64*3072}
    s_add_u32 s44, s44, s46
    s_mul_i32 s45, s45, 5120
    s_cmp_ge_u32 s20, 2
    s_cbranch_scc1 K4_dmaup
    s_mov_b32 m0, s45""")
    for i in range(5):
        a(f"s_nop 0\nbuffer_load_dwordx4 v4, s[8:11], s44 offen lds\ns_add_u32 m0, m0, 1024\ns_add_u32 s44, s44, {64*3072}")
    a(f"s_branch K4_nodma\nK4_dmaup:\ns_add_u32 m0, s45, {UPO}")
    for i in range(5):
        a(f"s_nop 0\nbuffer_load_dwordx4 v4, s[12:15], s44 offen lds\ns_add_u32 m0, m0, 1024\ns_add_u32 s44, s44, {64*3072}")
    a("K4_nodma:\ns_mov_b32 s33, 0xffff0000\ns_waitcnt vmcnt(0)")
    stamp_mid(a)
    a("v_mov_b32 v6, 0")
    for i in range(5):
        a(f"v_lshlrev_b32 v4, 16, v{56+i}\nv_and_b32 v5, s33, v{56+i}\nv_add_f32 v6, v6, v4\nv_add_f32 v6, v6, v5")
    def wave_sum(v, t):
        a(f"""v_add_f32_dpp v{v}, v{v}, v{v} quad_perm:[1,0,3,2] row_mask:0xf bank_mask:0xf
        v_add_f32_dpp v{v}, v{v}, v{v} quad_perm:[2,3,0,1] row_mask:0xf bank_mask:0xf
        v_add_f32_dpp v{v}, v{v}, v{v} row_half_mirror row_mask:0xf bank_mask:0xf
        v_add_f32_dpp v{v}, v{v}, v{v} row_mirror row_mask:0xf bank_mask:0xf
        v_mov_b32 v{t}, v{v}
        v_permlane16_swap_b32 v{t}, v{v}
        v_add_f32 v{v}, v{v}, v{t}
        v_mov_b32 v{t}, v{v}
        v_permlane32_swap_b32 v{t}, v{v}
        v_add_f32 v{v}, v{v}, v{t}""")
    wave_sum(6, 4)
    a(f"v_mov_b32 v7, 0\nv_mov_b32 v8, 0\ns_mov_b32 s44, {hx(1.0/640)}\ns_mov_b32 s45, 0xfffff800\nv_sub_u32 v9, 2047, v0")
    for i in range(8):
        b = STR + 4*i
        a(f"""v_mul_f32 v{b}, s44, v{b}
        v_mul_f32 v{b+1}, s44, v{b+1}
        v_fma_f32 v{b+1}, -v{b}, v{b}, v{b+1}
        v_max_f32 v{b+1}, 0, v{b+1}
        v_add_f32 v{b+1}, {hx(1e-5)}, v{b+1}
        v_rsq_f32 v{b+1}, v{b+1}
        v_fma_f32 v{b+2}, -v{b}, v6, v{b+2}
        v_mul_f32 v{b+2}, v{b+2}, v{b+1}       ; r
        v_ashrrev_i32 v4, 31, v{b+2}
        v_or_b32 v4, 0x80000000, v4
        v_xor_b32 v4, v4, v{b+2}               ; sortable
        v_subrev_u32 v5, {256*i}, v9
        v_and_or_b32 v4, v4, s45, v5
        v_med3_u32 v8, v7, v8, v4
        v_max_u32 v7, v7, v4""")
    def merge_dpp(mod):
        a(f"""v_mov_b32_dpp v4, v7 {mod} row_mask:0xf bank_mask:0xf
        v_max_u32_dpp v8, v8, v8 {mod} row_mask:0xf bank_mask:0xf
        v_med3_u32 v8, v7, v4, v8
        v_max_u32 v7, v7, v4""")
    for mod in ("quad_perm:[1,0,3,2]", "quad_perm:[2,3,0,1]", "row_half_mirror", "row_mirror"): merge_dpp(mod)
    for sw in ("v_permlane16_swap_b32", "v_permlane32_swap_b32"):
        a(f"""v_mov_b32 v4, v7
        v_mov_b32 v5, v8
        {sw} v4, v7
        {sw} v5, v8
        v_max_u32 v8, v8, v5
        v_med3_u32 v8, v7, v4, v8
        v_max_u32 v7, v7, v4""")
    a(f"""s_lshl_b32 s44, s20, 3
    s_add_u32 s44, s44, {RED}
    v_mov_b32 v4, s44
    v_mov_b32 v16, v7
    v_mov_b32 v17, v8
    ds_write_b64 v4, v[16:17]
    v_mov_b32 v4, {RED}
    s_waitcnt lgkmcnt(0)
    s_barrier
    ds_read_b128 v[16:19], v4
    ds_read_b128 v[20:23], v4 offset:16
    s_waitcnt lgkmcnt(0)
    v_max_u32 v8, v17, v19
    v_med3_u32 v8, v16, v18, v8
    v_max_u32 v7, v16, v18
    v_max_u32 v8, v8, v21
    v_med3_u32 v8, v7, v20, v8
    v_max_u32 v7, v7, v20
    v_max_u32 v8, v8, v23
    v_med3_u32 v8, v7, v22, v8
    v_max_u32 v7, v7, v22
    v_and_b32 v7, 0x7ff, v7
    v_and_b32 v8, 0x7ff, v8
    v_sub_u32 v7, 2047, v7             ; idx0
    v_sub_u32 v8, 2047, v8             ; idx1""")
    BF = 96; AF = 176
    a(f"""s_cmp_ge_u32 s21, 24
    s_cselect_b32 s47, 1, s20
    s_cmp_lg_u32 s47, 0
    s_cbranch_scc1 K4_out
    v_and_b32 v4, 1, v1
    v_cmp_eq_u32 vcc, 0, v4
    v_cndmask_b32 v20, v8, v7, vcc
    v_mul_u32_u24 v21, 1280, v20
    v_lshrrev_b32 v22, 4, v1           ; kg
    v_lshl_add_u32 v21, v22, 4, v21
    v_lshlrev_b32 v23, 4, v20""")
    for i in range(80): a(f"v_mov_b32 v{BF+i}, 0x3f803f80")
    a(f"s_mov_b32 s48, 0x00030003\ns_mov_b32 s49, 0x00030003\ns_mov_b64 exec, s[48:49]\ns_mov_b32 s44, {HB}\ns_mov_b32 s45, {ST}")
    for s in range(20): a(f"buffer_load_dwordx4 v[{BF+4*s}:{BF+4*s+3}], v21, s[16:19], s44 offen offset:{64*s}")
    a(f"""buffer_load_dwordx4 v[88:91], v23, s[16:19], s45 offen
    s_mov_b64 exec, -1
    v_bfe_u32 v4, v1, 2, 2             ; r
    v_lshl_add_u32 v4, v22, 3, v4      ; 8kg + r
    v_lshlrev_b32 v4, 4, v4
    v_and_b32 v5, 1, v1
    v_lshl_add_u32 v4, v5, 3, v4
    v_bfe_u32 v5, v1, 1, 1
    v_mul_u32_u24 v5, {UPO}, v5
    v_add_u32 v4, v4, v5""")
    for s in range(20):
        for t in range(2):
            a(f"ds_read_b64_tr_b16 v[{AF+4*s+2*t}:{AF+4*s+2*t+1}], v4 offset:{512*s+64*t}")
        if s % 4 == 3: a("s_waitcnt lgkmcnt(0)")
    for i in range(4): a(f"v_mov_b32 v{84+i}, 0")
    a("s_waitcnt vmcnt(0) lgkmcnt(0)")
    for s in range(20):
        a(f"v_mfma_f32_16x16x32_bf16 v[84:87], v[{AF+4*s}:{AF+4*s+3}], v[{BF+4*s}:{BF+4*s+3}], v[84:87]")
    a(f"""s_mov_b32 s44, {hx(1.0/640)}
    v_mul_f32 v88, s44, v88            ; mean
    v_mul_f32 v89, s44, v89
    v_fma_f32 v89, -v88, v88, v89
    v_max_f32 v89, 0, v89
    v_add_f32 v89, {hx(1e-5)}, v89
    v_rsq_f32 v89, v89                 ; rstd
    v_fma_f32 v90, -v88, v6, v90
    v_mul_f32 v90, v90, v89            ; r""")
    for i in range(4):
        a(f"""v_mov_b32_dpp v92, v{84+i} quad_perm:[2,2,2,2] row_mask:0xf bank_mask:0xf
        v_fma_f32 v{84+i}, -v88, v92, v{84+i}
        v_mul_f32 v{84+i}, v{84+i}, v89""")
    L2E = 1.4426950408889634
    for i in range(4):
        a(f"""v_mov_b32 v{92+i}, v{84+i}""")
    for i in range(4):
        a(f"v_permlane32_swap_b32 v{92+i}, v{84+i}")
    for i in range(4):
        a(f"""v_mul_f32 v4, {hx(-L2E)}, v{92+i}
        v_exp_f32 v4, v4
        v_add_f32 v4, 1.0, v4
        v_rcp_f32 v4, v4
        v_mul_f32 v4, v4, v{92+i}
        v_mul_f32 v{84+i}, v4, v{84+i}""")
    a(f"""v_cvt_pk_bf16_f32 v84, v84, v85
    v_cvt_pk_bf16_f32 v85, v86, v87
    v_and_b32 v4, 1, v1
    v_mul_u32_u24 v4, 3072, v4
    v_lshl_add_u32 v4, v22, 3, v4
    s_lshl_b32 s44, s22, 4
    s_add_u32 s44, s44, {ACT}
    s_mov_b64 exec, 0x00030003
    buffer_store_dwordx2 v[84:85], v4, s[16:19], s44 offen
    s_cmp_lg_u32 s2, 0
    s_cbranch_scc1 K4_nosel
    s_mov_b64 exec, 3
    v_mul_f32 v90, {hx(-L2E)}, v90
    v_exp_f32 v90, v90
    v_add_f32 v90, 1.0, v90
    v_rcp_f32 v90, v90
    v_mov_b32 v91, v20
    v_lshlrev_b32 v4, 4, v1
    s_mov_b32 s44, {SEL}
    buffer_store_dwordx4 v[88:91], v4, s[16:19], s44 offen
K4_nosel:
    s_mov_b64 exec, -1
K4_out:
    s_mov_b32 s44, {hx(1.0/640)}
    s_lshl_b32 s45, s2, 3""")
    for i in range(3):
        m = SR + 2*i
        a(f"""v_mul_f32 v{m}, s44, v{m}
        v_mul_f32 v{m+1}, s44, v{m+1}
        v_fma_f32 v{m+1}, -v{m}, v{m}, v{m+1}
        v_max_f32 v{m+1}, 0, v{m+1}
        v_add_f32 v{m+1}, {hx(1e-5)}, v{m+1}
        v_rsq_f32 v{m+1}, v{m+1}
        v_add_u32 v{13+i}, s45, v{13+i}
        v_mul_f32 v{m}, -v{m}, v{m+1}
        v_add_f32 v{m+1}, 1.0, v{m+1}""")
        for k in range(4):
            a(f"""v_lshlrev_b32 v4, 16, v{HR+4*i+k}
            v_and_b32 v5, s33, v{HR+4*i+k}
            v_fma_f32 v4, v4, v{m+1}, v{m}
            v_fma_f32 v5, v5, v{m+1}, v{m}
            v_cvt_pk_bf16_f32 v{HR+4*i+k}, v4, v5""")
        a(f"buffer_store_dwordx4 v[{HR+4*i}:{HR+4*i+3}], v{10+i}, s[36:39], s41 offen")
    stamp_end(a, 3, 16, 2, 3)
    a("K4_exit:\ns_endpgm")
    return dict(name="k4_kernel", lines=a.lines, vgpr=256, grid=256, block=256, lds=RED + 64)

def k5():
    a = Asm()
    RED = 49152
    stamp_begin(a)
    a(f"""s_cmp_ge_u32 s2, 40
    s_cbranch_scc1 K5_exit
    s_load_dwordx4 s[4:7], s[0:1], 56
    s_load_dwordx2 s[24:25], s[0:1], 80
    v_lshrrev_b32 v1, 6, v0
    s_and_b32 s22, s2, 7
    v_readfirstlane_b32 s20, v1
    v_and_b32 v0, 63, v0
    s_mul_i32 s22, s22, 5
    s_lshr_b32 s21, s2, 3
    s_add_u32 s22, s22, s21
    v_lshrrev_b32 v2, 1, v0
    v_mul_u32_u24 v2, 1280, v2
    v_and_b32 v3, 1, v0
    v_lshl_add_u32 v2, v3, 4, v2
    s_mul_i32 s26, s20, {384*1280}
    s_lshl_b32 s27, s22, 5
    s_add_u32 s26, s26, s27
    s_mul_i32 s28, s20, 12288
    s_mov_b32 m0, s28
    s_waitcnt lgkmcnt(0)""")
    srd(a, 8, 4, 1966080); srd(a, 12, 6, 2621440); srd(a, 16, 24, WS_SIZE)
    BF = 24; AF = 72
    a(f"""v_lshrrev_b32 v6, 4, v0
    v_mul_u32_u24 v4, 3072, v3
    v_lshl_add_u32 v4, v6, 4, v4
    s_mul_i32 s29, s20, 768
    s_add_u32 s29, s29, {ACT}
    v_lshlrev_b32 v5, 4, v3
    s_mov_b32 s30, {SEL}
    buffer_load_dwordx4 v[16:19], v5, s[16:19], s30 offen""")
    for s in range(12): a(f"buffer_load_dwordx4 v[{BF+4*s}:{BF+4*s+3}], v4, s[16:19], s29 offen offset:{64*s}")
    for s in range(12):
        a(f"buffer_load_dwordx4 v2, s[8:11], s26 offen lds\ns_add_u32 m0, m0, 1024\ns_add_u32 s26, s26, {32*1280}")
    a(f"""v_bfe_u32 v7, v0, 2, 2
    v_lshl_add_u32 v7, v6, 3, v7
    v_lshlrev_b32 v7, 5, v7
    v_and_b32 v8, 3, v0
    v_lshl_add_u32 v7, v8, 3, v7
    v_add_u32 v7, s28, v7
    s_waitcnt vmcnt(24)
    v_mul_u32_u24 v9, 1280, v19
    v_lshl_add_u32 v9, v6, 3, v9
    v_add_u32 v9, s27, v9
    s_mov_b32 s30, {HB}
    buffer_load_dwordx2 v[20:21], v9, s[16:19], s30 offen""")
    for i in range(4): a(f"v_mov_b32 v{12+i}, 0")
    a("s_waitcnt vmcnt(0)")
    stamp_mid(a)
    for s in range(12):
        for t in range(2):
            a(f"ds_read_b64_tr_b16 v[{AF+4*s+2*t}:{AF+4*s+2*t+1}], v7 offset:{1024*s+128*t}")
        if s % 4 == 3: a("s_waitcnt lgkmcnt(0)")
    for s in range(12):
        a(f"v_mfma_f32_16x16x32_bf16 v[12:15], v[{AF+4*s}:{AF+4*s+3}], v[{BF+4*s}:{BF+4*s+3}], v[12:15]")
    a(f"""s_lshl_b32 s29, s20, 10
    s_add_u32 s29, s29, {RED}
    v_lshl_add_u32 v10, v0, 4, s29
    ds_write_b128 v10, v[12:15]
    s_waitcnt lgkmcnt(0)
    s_barrier
    s_cmp_lg_u32 s20, 0
    s_cbranch_scc1 K5_done
    ds_read_b128 v[24:27], v10 offset:1024
    ds_read_b128 v[28:31], v10 offset:2048
    ds_read_b128 v[32:35], v10 offset:3072
    s_mov_b32 s33, 0xffff0000
    v_mul_f32 v16, -v16, v17
    v_add_f32 v17, 1.0, v17
    v_lshlrev_b32 v36, 16, v20
    v_and_b32 v37, s33, v20
    v_lshlrev_b32 v38, 16, v21
    v_and_b32 v39, s33, v21
    s_waitcnt lgkmcnt(0)""")
    for i in range(4):
        a(f"""v_add_f32 v{12+i}, v{12+i}, v{24+i}
        v_add_f32 v{28+i}, v{28+i}, v{32+i}
        v_add_f32 v{12+i}, v{12+i}, v{28+i}
        v_fma_f32 v{36+i}, v{36+i}, v17, v16
        v_fma_f32 v{36+i}, v{12+i}, v18, v{36+i}""")
    a(f"""v_cvt_pk_bf16_f32 v36, v36, v37
    v_cvt_pk_bf16_f32 v37, v38, v39
    s_mov_b32 s30, 0x00030003
    s_mov_b32 s31, 0x00030003
    s_mov_b64 exec, s[30:31]
    buffer_store_dwordx2 v[36:37], v9, s[12:15], 0 offen
K5_done:""")
    stamp_end(a, 4, 16, 2, 3)
    a("K5_exit:\ns_endpgm")
    return dict(name="k5_kernel", lines=a.lines, vgpr=128, grid=40, block=256, lds=RED + 4096)

def emit(kernels, path, verbose=True):
    hdr = open(f"cdna_kernels/{NAME}.s.ref").read().split("; Override launch")[0]
    out = hdr
    for k in kernels:
        out += f"; @launch kernel={k['name']} grid=({k['grid']},1,1) block=({k['block']},1,1) lds={k['lds']}\n"
    out += '.amdgcn_target "amdgcn-amd-amdhsa--gfx950"\n.text\n'
    seen = []
    for k in kernels:
        if k['name'] in seen: continue
        seen.append(k['name'])
        lines = fix_hazards(k['lines'], verbose, k['name'])
        out += f".globl {k['name']}\n.p2align 8\n.type {k['name']},@function\n{k['name']}:\n" + "\n".join(lines) + "\n"
    out += '.section .rodata,"a"\n'
    seen = []
    for k in kernels:
        if k['name'] in seen: continue
        seen.append(k['name'])
        out += f""".p2align 6
.amdhsa_kernel {k['name']}
  .amdhsa_next_free_vgpr {k['vgpr']}
  .amdhsa_next_free_sgpr 96
  .amdhsa_accum_offset {k['vgpr']}
  .amdhsa_group_segment_fixed_size 0
  .amdhsa_kernarg_size 88
  .amdhsa_user_sgpr_count 2
  .amdhsa_user_sgpr_kernarg_segment_ptr 1
  .amdhsa_system_sgpr_workgroup_id_x 1
.end_amdhsa_kernel
"""
    open(path, "w").write(out)

if __name__ == "__main__":
    path = [x for x in sys.argv[1:] if not x.startswith("--")][0]
    emit([k1(), k2(), k3(), k4(), k5()], path)
    if "--empty5" in sys.argv:
        e = dict(name="ke_kernel", lines=["    s_endpgm"], vgpr=8, grid=256, block=256, lds=0)
        emit([k1(), k2(), k3(), k4(), k5(), e, e, e, e, e], path, False)
    if "--dup2" in sys.argv:
        emit([k1(), k2(), k2(), k3(), k4(), k5()], path, False)
    if "--dup1" in sys.argv:
        emit([k1(), k1(), k2(), k3(), k4(), k5()], path, False)
    if "--dup45" in sys.argv:
        emit([k1(), k2(), k3(), k4(), k5(), k4(), k5()], path, False)
```

```python
import sys, struct
sys.path.insert(0, "gen")
from asmlib import Asm, fix_hazards

NAME = "sequential_preLN__mha_block__moe_arch_mod__prompt"
QB = 0x000000; KB = 0x280000; VB = 0x500000; OB = 0x780000; HB = 0xA00000
ST = 0xC80000; ACT = 0xC90000; SEL = 0xC94000; TS = 0xD00000; WS_SIZE = 0xE00000
STAMP = "--stamp" in sys.argv

def f2u(x): return struct.unpack("<I", struct.pack("<f", x))[0]
def hx(x): return hex(f2u(x))

def srd(a, d, b, size):
    a(f"""s_mov_b32 s{d}, s{b}
    s_and_b32 s{d+1}, s{b+1}, 0xffff
    s_mov_b32 s{d+2}, {size}
    s_mov_b32 s{d+3}, 0x20000""")

def stamp_begin(a):
    if STAMP: a("s_memrealtime s[90:91]\ns_memtime s[86:87]\ns_mov_b32 s84, 0")
def stamp_mid(a):
    if STAMP: a("s_memtime s[84:85]")
def stamp_end(a, kid, srdws, vt0, vt1):
    if STAMP:
        a(f"""s_memrealtime s[92:93]
        s_memtime s[88:89]
        s_waitcnt lgkmcnt(0)
        s_sub_u32 s88, s88, s86
        s_sub_u32 s84, s84, s86
        s_lshl_b32 s94, s2, 3
        s_add_u32 s94, s94, s20
        s_lshl_b32 s94, s94, 4
        s_add_u32 s94, s94, {TS + kid*65536}
        v_mov_b32 v4, s90
        v_mov_b32 v5, s92
        v_mov_b32 v6, s88
        v_mov_b32 v7, s84
        s_mov_b64 exec, 1
        buffer_store_dwordx4 v[4:7], off, s[{srdws}:{srdws+3}], s94
        s_waitcnt vmcnt(0)""")

def k1():
    a = Asm()
    SLOT = 32768; WOFF = 16384; STAB = 131072
    stamp_begin(a)
    a(f"""s_cmp_ge_u32 s2, 256
    s_cbranch_scc1 K1_exit
    s_load_dwordx4 s[4:7], s[0:1], 0
    s_load_dwordx2 s[24:25], s[0:1], 80
    v_lshrrev_b32 v1, 6, v0
    v_and_b32 v0, 63, v0
    s_and_b32 s23, s2, 7
    v_readfirstlane_b32 s20, v1
    s_lshr_b32 s26, s2, 3
    s_lshr_b32 s21, s23, 1
    s_lshl_b32 s21, s21, 2
    s_and_b32 s27, s26, 3
    s_add_u32 s21, s21, s27          ; rb
    s_and_b32 s22, s23, 1
    s_lshl_b32 s22, s22, 3
    s_lshr_b32 s27, s26, 2
    s_add_u32 s22, s22, s27          ; cg
    s_waitcnt lgkmcnt(0)""")
    srd(a, 8, 4, 2621440); srd(a, 12, 6, 2457600); srd(a, 16, 24, WS_SIZE)
    a(f"""s_cmp_eq_u32 s22, 15
    s_cbranch_scc1 K1_spare
    s_cmp_lt_u32 s20, 4
    s_cbranch_scc1 K1_consumer""")
    a(f"""s_sub_u32 s26, s20, 4          ; lw
    s_add_u32 s27, s21, s22
    s_cmp_ge_u32 s27, 20
    s_cselect_b32 s28, 20, 0
    s_sub_u32 s27, s27, s28
    s_cmp_ge_u32 s27, 10
    s_cselect_b32 s28, 10, 0
    s_sub_u32 s27, s27, s28            ; kc = (rb+cg)%10
    v_lshrrev_b32 v1, 3, v0            ; r8
    v_and_b32 v2, 7, v0
    v_lshrrev_b32 v3, 1, v1            ; r8>>1
    v_xor_b32 v2, v2, v3
    s_lshl_b32 s28, s21, 7
    s_lshl_b32 s29, s26, 5
    s_add_u32 s28, s28, s29
    v_add_u32 v1, s28, v1              ; row (j=0)
    v_mul_u32_u24 v1, 1280, v1
    v_xor_b32 v3, 4, v2
    v_lshl_add_u32 v10, v2, 4, v1
    v_lshl_add_u32 v11, v3, 4, v1
    v_add_u32 v12, {2*(10240-1024)}, v10
    v_add_u32 v11, {1*(10240-1024)}, v11
    v_add_u32 v13, {2*(10240-1024)}, v11
    v_lshrrev_b32 v1, 4, v0            ; r4
    v_and_b32 v2, 15, v0
    v_lshlrev_b32 v3, 2, v1
    v_xor_b32 v2, v2, v3
    s_lshl_b32 s28, s26, 4
    v_add_u32 v1, s28, v1
    v_mul_u32_u24 v1, 3840, v1
    s_lshl_b32 s28, s22, 8
    v_lshl_add_u32 v1, v2, 4, v1
    v_add_u32 v14, s28, v1
    v_add_u32 v15, {1*(15360-1024)}, v14
    v_add_u32 v16, {2*(15360-1024)}, v14
    v_add_u32 v17, {3*(15360-1024)}, v14
    s_lshl_b32 s30, s26, 12
    s_mov_b32 s31, 0
K1_ld_loop:
    s_cmp_lt_u32 s31, 3
    s_cbranch_scc1 K1_ld_issue
    s_waitcnt vmcnt(16)
    s_barrier
K1_ld_issue:
    s_lshl_b32 s28, s27, 7
    s_mul_i32 s29, s27, {64*3840}
    s_mov_b32 m0, s30
    s_add_u32 s27, s27, 1""")
    for j in range(4):
        a(f"buffer_load_dwordx4 v{10+j}, s[8:11], s28 offen offset:{j*1024} lds")
    a(f"""s_add_u32 m0, s30, {WOFF}
    s_cmp_eq_u32 s27, 10""")
    for j in range(4):
        a(f"buffer_load_dwordx4 v{14+j}, s[12:15], s29 offen offset:{j*1024} lds")
    a(f"""s_cselect_b32 s27, 0, s27
    s_add_u32 s30, s30, {SLOT}
    s_and_b32 s30, s30, {4*SLOT-1}
    s_add_u32 s31, s31, 1
    s_cmp_lt_u32 s31, 10
    s_cbranch_scc1 K1_ld_loop
    s_waitcnt vmcnt(16)
    s_barrier
    s_waitcnt vmcnt(8)
    s_barrier
    s_waitcnt vmcnt(0)
    s_barrier""")
    stamp_end(a, 0, 16, 2, 3)
    a("s_endpgm")
    a(f"""K1_spare:
    s_cmp_ge_u32 s20, 2
    s_cbranch_scc1 K1_exit
    v_lshlrev_b32 v1, 4, v0
    s_lshl_b32 s26, s21, 11
    s_lshl_b32 s27, s20, 10
    s_add_u32 s26, s26, s27
    s_add_u32 s26, s26, {ST}
    v_mov_b32 v4, 0
    v_mov_b32 v5, 0
    v_mov_b32 v6, 0
    v_mov_b32 v7, 0
    buffer_store_dwordx4 v[4:7], v1, s[16:19], s26 offen
K1_exit:
    s_endpgm""")
    a(f"""K1_consumer:
    s_lshr_b32 s26, s20, 1             ; tw
    s_and_b32 s27, s20, 1              ; fw
    v_and_b32 v17, 31, v0              ; n
    v_lshrrev_b32 v18, 5, v0           ; hh
    v_bfe_u32 v19, v0, 1, 3            ; (n>>1)&7
    v_xor_b32 v19, v19, v18
    v_lshlrev_b32 v19, 4, v19
    v_lshl_add_u32 v19, v17, 7, v19
    s_lshl_b32 s28, s20, 12            ; (2tw+fw)*4096
    v_add_u32 v2, s28, v19
    v_xor_b32 v3, 32, v2
    v_xor_b32 v4, 64, v2
    v_xor_b32 v5, 96, v2
    v_xor_b32 v6, 4096, v2
    v_xor_b32 v7, 4096, v3
    v_xor_b32 v8, 4096, v4
    v_xor_b32 v9, 4096, v5
    v_bfe_u32 v19, v0, 2, 2            ; r
    v_bfe_u32 v20, v0, 4, 1            ; mhalf
    v_and_b32 v21, 1, v0               ; c0
    v_bfe_u32 v22, v0, 1, 1            ; c1
    s_cmp_ge_u32 s22, 10
    s_cselect_b64 s[30:31], -1, 0
    v_cndmask_b32 v23, v21, v22, s[30:31]
    v_cndmask_b32 v62, v22, v21, s[30:31]
    v_lshl_add_u32 v23, v20, 1, v23
    s_lshl_b32 s28, s27, 1
    s_add_u32 s28, s28, s26
    v_xor_b32 v63, s28, v19
    v_lshl_add_u32 v23, v63, 2, v23           ; slot
    v_lshlrev_b32 v23, 4, v23
    v_lshl_add_u32 v23, v62, 3, v23
    v_lshl_add_u32 v19, v18, 3, v19           ; 8hh + r
    v_lshl_add_u32 v23, v19, 8, v23
    v_add_u32 v10, {WOFF}, v23
    v_xor_b32 v11, 64, v10
    ; smfmac constants: row=l%16 -> fr=row>>2, par=(row>>1)&1, pp=row&1 ; on if row<8 && (l>>5)==fr && (reg>>1)==par
    v_bfe_u32 v19, v0, 2, 2            ; row>>2 (0..3)
    v_cmp_eq_u32 vcc, v19, v18
    v_mov_b32 v20, 0x3f803f80
    v_cndmask_b32 v20, 0, v20, vcc
    v_cmp_eq_u32 vcc, 0, v22
    v_mov_b32 v16, 0xeeee
    v_mov_b32 v19, 0x4444
    v_cndmask_b32 v12, 0, v20, vcc
    v_cndmask_b32 v14, v20, 0, vcc
    v_cmp_eq_u32 vcc, 0, v21
    v_mov_b32 v13, v12
    v_mov_b32 v15, v14
    v_cndmask_b32 v16, v16, v19, vcc""")
    for i in range(56, 62): a(f"v_mov_b32 v{i}, 0")
    for i in range(64, 128): a(f"v_mov_b32 v{i}, 0")
    def reads(p, ks):
        b = 24 + 16*p
        return [f"ds_read_b128 v[{b}:{b+3}], v{2+ks}",
                f"ds_read_b64_tr_b16 v[{b+4}:{b+5}], v10 offset:{ks*4096}",
                f"ds_read_b64_tr_b16 v[{b+6}:{b+7}], v10 offset:{ks*4096+1024}",
                f"ds_read_b128 v[{b+8}:{b+11}], v{6+ks}",
                f"ds_read_b64_tr_b16 v[{b+12}:{b+13}], v11 offset:{ks*4096}",
                f"ds_read_b64_tr_b16 v[{b+14}:{b+15}], v11 offset:{ks*4096+1024}"]
    a(f"s_mov_b32 s29, 0\ns_mov_b32 s32, {SLOT}\ns_mov_b32 s33, 0xffff0000\ns_barrier")
    stamp_mid(a)
    for r in reads(0, 0): a(r)
    a("s_cmp_ge_u32 s22, 10\ns_cbranch_scc1 K1_loopV")
    for vt in (0, 1):
        L = "K1_loopV" if vt else "K1_loopQ"
        a(f".p2align 3\n{L}:")
        for ks in range(4):
            p = ks & 1; b = 24 + 16*p
            X = [f"v[{b}:{b+3}]", f"v[{b+8}:{b+11}]"]; W = [f"v[{b+4}:{b+7}]", f"v[{b+12}:{b+15}]"]
            a("s_waitcnt lgkmcnt(0)")
            upd = []
            if ks == 3:
                a(f"""s_add_u32 s29, s29, 1
                s_and_b32 s28, s29, 3
                s_cselect_b32 s28, s32, {(-3*SLOT) & 0xffffffff}
                s_barrier
                v_add_u32 v2, s28, v2
                v_add_u32 v10, s28, v10
                v_add_u32 v6, s28, v6
                v_add_u32 v11, s28, v11""")
                upd = [f"v_add_u32 v{i}, s28, v{i}" for i in (3, 7, 4, 8, 5, 9)]
            rd = reads(1 - p, (ks + 1) & 3)
            sq = []
            for i in range(4):
                sq += [f"v_lshlrev_b32 v62, 16, v{b+i}", f"v_and_b32 v63, s33, v{b+i}", "v_fmac_f32 v60, v62, v62", "v_fmac_f32 v61, v63, v63"]
            mf = []
            for (aa, bb) in ((0, 0), (0, 1), (1, 1), (1, 0)):
                acc = 64 + 16*(2*aa + bb)
                o = (X[aa], W[bb]) if vt else (W[bb], X[aa])
                mf.append(f"v_mfma_f32_32x32x16_bf16 v[{acc}:{acc+15}], {o[0]}, {o[1]}, v[{acc}:{acc+15}]")
            a(mf[0]); a(rd[0]); a(rd[1]); a(rd[2])
            for s in sq[0:4]: a(s)
            a(mf[1]); a(rd[3]); a(rd[4]); a(rd[5])
            for s in sq[4:8]: a(s)
            a(mf[2])
            for s in sq[8:12] + upd[0:2]: a(s)
            a(mf[3])
            for s in sq[12:16] + upd[2:4]: a(s)
            a(f"v_smfmac_f32_16x16x64_bf16 v[56:59], v[12:15], v[{b}:{b+7}], v16")
            for s in upd[4:6]: a(s)
        a(f"s_cmp_lt_u32 s29, 10\ns_cbranch_scc1 {L}")
        if not vt: a("s_branch K1_epi")
    qscale = 1.4426950408889634 * (20 ** -0.5)
    a(f"""K1_epi:
    v_add_f32 v60, v60, v61
    v_mov_b32 v61, v60
    s_cmp_lt_u32 s22, 5
    s_cselect_b32 s34, {hx(qscale)}, 1.0
    v_permlane32_swap_b32 v60, v61
    v_add_f32 v60, v60, v61            ; sumsq (all lanes: token l%32)
    v_add_f32 v56, v56, v57
    v_add_f32 v58, v58, v59
    v_permlane16_swap_b32 v56, v58
    v_mul_f32 v56, {hx(1.0/640)}, v56  ; mean
    v_mul_f32 v60, {hx(1.0/640)}, v60
    v_fma_f32 v60, -v56, v56, v60      ; var
    v_max_f32 v60, 0, v60
    v_add_f32 v60, {hx(1e-5)}, v60
    v_rsq_f32 v60, v60
    v_mul_f32 v60, s34, v60            ; A
    v_mul_f32 v61, -v56, v60
    s_lshl_b32 s28, s20, 7
    s_add_u32 s28, s28, {STAB}
    v_lshl_add_u32 v62, v17, 2, s28
    s_lshl_b32 s30, s27, 1
    s_add_u32 s30, s30, s26
    s_lshl_b32 s31, s30, 7
    s_add_u32 s31, s31, {STAB}
    v_lshl_add_u32 v63, v17, 2, s31
    s_waitcnt lgkmcnt(0)
    s_mov_b32 exec_hi, 0
    ds_write_b32 v62, v60
    ds_write_b32 v62, v61 offset:512
    ds_write_b32 v63, v58 offset:1024
    s_mov_b64 exec, -1
    ; T values
    s_lshl_b32 s35, s21, 2
    s_add_u32 s35, s35, s20            ; T for a'=0
    s_xor_b32 s36, s35, 1              ; T for a'=1
    s_cmp_ge_u32 s22, 10
    s_cbranch_scc1 K1_epiV""")
    a(f"""s_mul_i32 s35, s35, 2560
    s_mul_i32 s36, s36, 2560
    s_cmp_ge_u32 s22, 5
    s_cselect_b32 s37, 5, 0
    s_cselect_b32 s38, {KB}, {QB}
    s_cselect_b64 s[40:41], -1, 0
    s_sub_u32 s37, s22, s37            ; cgl
    s_add_u32 s35, s35, s38
    s_add_u32 s36, s36, s38
    ; m = K ? swap23(n) : n
    v_and_b32 v19, 0x13, v17
    v_bfe_u32 v20, v17, 2, 1
    v_bfe_u32 v21, v17, 3, 1
    v_lshl_add_u32 v19, v20, 3, v19
    v_lshl_add_u32 v19, v21, 2, v19
    v_cndmask_b32 v19, v17, v19, s[40:41]
    v_lshlrev_b32 v19, 4, v19          ; m*16
    s_lshl_b32 s37, s37, 4""")
    for bb in range(2):
        for half in range(2):
            d = 2 + 2*bb + half
            a(f"""s_xor_b32 s39, s30, {bb}
            s_lshl_b32 s39, s39, 2
            s_add_u32 s39, s39, s37
            s_add_u32 s39, s39, {2*half}
            v_add_u32 v20, s39, v18            ; U
            v_mul_u32_u24 v21, 205, v20
            v_lshrrev_b32 v21, 10, v21         ; hp = U/5
            v_mul_u32_u24 v22, {163840 - 5*512}, v21
            v_lshl_add_u32 v22, v20, 9, v22
            v_add_u32 v{d}, v22, v19""")
    a(f"""v_xor_b32 v6, 128, v62
    v_lshl_add_u32 v7, v18, 4, s31
    v_xor_b32 v8, 128, v7
    s_waitcnt lgkmcnt(0)
    s_barrier
    ds_read_b32 v10, v62
    ds_read_b32 v12, v62 offset:512
    ds_read_b32 v14, v6
    ds_read_b32 v16, v6 offset:512""")
    for bb in range(2):
        for g in range(4):
            a(f"ds_read_b128 v[{24+16*bb+4*g}:{27+16*bb+4*g}], v{7+bb} offset:{1024+32*g}")
    a("s_waitcnt lgkmcnt(0)")
    for aa in range(2):
        for bb in range(2):
            acc = 64 + 16*(2*aa + bb)
            A = 10 + 4*aa; B = 12 + 4*aa
            for half in range(2):
                for i in range(4):
                    r = 8*half + 2*i
                    a(f"v_pk_mul_f32 v[{acc+r}:{acc+r+1}], v[{acc+r}:{acc+r+1}], v[{A}:{A+1}] op_sel_hi:[1,0]")
                for i in range(4):
                    r = 8*half + 2*i
                    a(f"v_pk_fma_f32 v[{acc+r}:{acc+r+1}], v[{24+16*bb+r}:{25+16*bb+r}], v[{B}:{B+1}], v[{acc+r}:{acc+r+1}] op_sel_hi:[1,0,1]")
                for i in range(4):
                    r = 8*half + 2*i
                    a(f"v_cvt_pk_bf16_f32 v{acc+8*half+i}, v{acc+r}, v{acc+r+1}")
                a(f"buffer_store_dwordx4 v[{acc+8*half}:{acc+8*half+3}], v{2+2*bb+half}, s[16:19], s{35+aa} offen")
    stamp_end(a, 0, 16, 2, 3)
    a("s_endpgm")
    a(f"""K1_epiV:
    s_mul_i32 s35, s35, 1280
    s_mul_i32 s36, s36, 1280
    s_add_u32 s35, s35, {VB}
    s_add_u32 s36, s36, {VB}
    s_sub_u32 s37, s22, 10
    s_lshl_b32 s37, s37, 7
    v_mul_u32_u24 v19, 320, v18""")
    for bb in range(2):
        a(f"""s_xor_b32 s39, s30, {bb}
        s_lshl_b32 s39, s39, 5
        s_add_u32 s39, s39, s37
        v_add_u32 v20, s39, v17            ; col
        v_mul_u32_u24 v21, 3277, v20
        v_lshrrev_b32 v21, 16, v21
        v_mul_u32_u24 v22, {81920 - 320}, v21
        v_lshl_add_u32 v22, v20, 4, v22
        v_add_u32 v{2+bb}, v22, v19""")
    a(f"""v_xor_b32 v6, 128, v63
    v_lshl_add_u32 v7, v18, 4, s28
    v_xor_b32 v8, 128, v7
    s_waitcnt lgkmcnt(0)
    s_barrier
    ds_read_b32 v10, v63 offset:1024
    ds_read_b32 v12, v6 offset:1024""")
    for aa in range(2):
        for g in range(4):
            a(f"ds_read_b128 v[{24+4*g}:{27+4*g}], v{7+aa} offset:{32*g}")
            a(f"ds_read_b128 v[{40+4*g}:{43+4*g}], v{7+aa} offset:{512+32*g}")
        a("s_waitcnt lgkmcnt(0)")
        for bb in range(2):
            acc = 64 + 16*(2*aa + bb)
            C = 10 + 2*bb
            for half in range(2):
                for i in range(4):
                    r = 8*half + 2*i
                    a(f"v_pk_mul_f32 v[{acc+r}:{acc+r+1}], v[{acc+r}:{acc+r+1}], v[{24+r}:{25+r}]")
                for i in range(4):
                    r = 8*half + 2*i
                    a(f"v_pk_fma_f32 v[{acc+r}:{acc+r+1}], v[{40+r}:{41+r}], v[{C}:{C+1}], v[{acc+r}:{acc+r+1}] op_sel_hi:[1,0,1]")
                for i in range(4):
                    r = 8*half + 2*i
                    a(f"v_cvt_pk_bf16_f32 v{acc+8*half+i}, v{acc+r}, v{acc+r+1}")
                a(f"buffer_store_dwordx4 v[{acc+8*half}:{acc+8*half+3}], v{2+bb}, s[16:19], s{35+aa} offen offset:{640*half}")
    stamp_end(a, 0, 16, 2, 3)
    a("s_endpgm")
    return dict(name="k1_kernel", lines=a.lines, vgpr=128, grid=256, block=512, lds=STAB + 2048)

def k2():
    a = Asm()
    SLOT = 22528; NSLOT = 4; VOFF = 12288
    S = [0+16, 32+16]
    O = 80
    QM = 96; QT = 100
    KM = [104, 112]
    KT = [102, 120]
    V = [124, 140]
    AKM, AKT, AV, IDX = 2, 3, 4, 5
    D0 = 6
    stamp_begin(a)
    a(f"""s_cmp_ge_u32 s2, 256
    s_cbranch_scc1 K2_exit
    s_load_dwordx2 s[24:25], s[0:1], 80
    v_lshrrev_b32 v1, 6, v0
    v_and_b32 v0, 63, v0
    s_and_b32 s21, s2, 7
    v_readfirstlane_b32 s20, v1
    s_lshl_b32 s21, s21, 2
    s_bfe_u32 s22, s2, 0x20003
    s_add_u32 s21, s21, s22            ; head
    s_lshr_b32 s22, s2, 5              ; qb
    s_lshr_b32 s23, s21, 1             ; hp
    s_and_b32 s26, s21, 1              ; odd
    s_mul_i32 s27, s23, 163840
    s_lshl_b32 s28, s26, 10
    s_add_u32 s28, s28, s27
    s_add_u32 s28, s28, {KB}
    s_mul_i32 s29, s21, 81920
    s_add_u32 s29, s29, {VB}
    v_lshlrev_b32 v9, 4, v0            ; lane*16""")
    a(f"""s_lshl_b32 s30, s20, 10
    v_add_u32 v10, s30, v9             ; b = 1024*i0 + 16*l
    v_lshrrev_b32 v11, 9, v10
    v_mul_u32_u24 v11, 43, v11
    v_lshrrev_b32 v11, 7, v11          ; tile = b/1536
    v_lshl_add_u32 v{D0}, v11, 10, v10
    v_add_u32 v10, 8192, v10
    v_lshrrev_b32 v11, 9, v10
    v_mul_u32_u24 v11, 43, v11
    v_lshrrev_b32 v11, 7, v11
    v_lshl_add_u32 v11, v11, 10, v10
    v_subrev_u32 v12, {VOFF}, v10
    s_movk_i32 s38, 10240
    s_cmp_lt_u32 s20, 4
    s_cselect_b64 s[32:33], -1, 0
    s_cselect_b32 s35, s28, s29        ; soffset i1
    s_cselect_b32 s38, 20480, s38      ; stride i1
    v_cndmask_b32 v{D0+1}, v12, v11, s[32:33]
    s_add_u32 s31, s20, 16
    s_min_u32 s31, s31, 21
    s_lshl_b32 s31, s31, 10
    s_sub_u32 s39, s31, {VOFF}
    v_add_u32 v{D0+2}, s39, v9
    s_mov_b32 s34, s28                 ; soffset i0
    s_mov_b32 s36, s29                 ; soffset i2
    s_mov_b32 s37, 0
    s_waitcnt lgkmcnt(0)""")
    srd(a, 16, 24, WS_SIZE)
    def dma():
        a(f"""s_add_u32 m0, s37, s30
        s_add_u32 s39, s37, s31
        buffer_load_dwordx4 v{D0}, s[16:19], s34 offen lds
        s_add_u32 m0, m0, 8192
        s_add_u32 s34, s34, 20480
        buffer_load_dwordx4 v{D0+1}, s[16:19], s35 offen lds
        s_mov_b32 m0, s39
        s_add_u32 s35, s35, s38
        buffer_load_dwordx4 v{D0+2}, s[16:19], s36 offen lds
        s_add_u32 s36, s36, 10240
        s_add_u32 s37, s37, {SLOT}
        s_cmp_eq_u32 s37, {SLOT*NSLOT}
        s_cselect_b32 s37, 0, s37""")
    dma()
    a(f"""s_lshl_b32 s40, s22, 3
    s_add_u32 s40, s40, s20            ; T
    s_mul_i32 s41, s40, 2560
    s_add_u32 s41, s41, s27            ; QB=0
    s_mul_i32 s42, s26, 1536
    s_add_u32 s42, s42, s41
    buffer_load_dwordx4 v[{QM}:{QM+3}], v9, s[16:19], s42 offen
    v_and_b32 v10, 31, v0
    v_lshlrev_b32 v11, 4, v10
    s_lshl_b32 s42, s26, 3
    s_add_u32 s42, s42, s41
    buffer_load_dwordx2 v[{QT}:{QT+1}], v11, s[16:19], s42 offen offset:1024""")
    dma(); dma()
    a(f"""; LDS read addresses
    s_lshl_b32 s42, s26, 9
    v_add_u32 v{AKM}, s42, v9
    v_lshrrev_b32 v12, 5, v0
    v_mul_u32_u24 v13, 1536, v12
    s_xor_b32 s42, s26, 1
    s_lshl_b32 s42, s42, 10
    s_lshl_b32 s43, s26, 3
    s_add_u32 s42, s42, s43
    v_add3_u32 v{AKT}, v13, v11, s42
    v_mul_u32_u24 v13, 320, v12
    s_movk_i32 s42, {VOFF}
    v_add3_u32 v{AV}, v13, v11, s42
    v_mov_b32 v{IDX}, 0xdddddddd
    s_mov_b32 s44, 0x000fffff
    s_mov_b32 s45, 0x000fffff""")
    for i in range(16):
        a(f"v_mov_b32 v{O+i}, 0")
        a(f"v_mov_b32 v{V[0]+i}, 0x3f803f80")
        a(f"v_mov_b32 v{V[1]+i}, 0x3f803f80")
    for i in range(8): a(f"v_mov_b32 v{S[1]+24+i}, 0")
    def rdK(buf, pl):
        return [f"ds_read_b64 v[{KT[buf]}:{KT[buf]+1}], v{AKT} offset:{pl*3072}",
                f"ds_read_b128 v[{KM[buf]}:{KM[buf]+3}], v{AKM} offset:{pl*3072}",
                f"ds_read_b128 v[{KM[buf]+4}:{KM[buf]+7}], v{AKM} offset:{pl*3072+1536}"]
    def rdV(buf, pl):
        return ["s_mov_b64 exec, s[44:45]"] + [f"ds_read_b128 v[{V[buf]+4*i}:{V[buf]+4*i+3}], v{AV} offset:{pl*2560+640*i}" for i in range(4)] + ["s_mov_b64 exec, -1"]
    def m2b(buf, kb): return f"v_mfma_f32_32x32x4_2b_bf16 v[{S[buf]}:{S[buf]+31}], v[{KT[kb]}:{KT[kb]+1}], v[{QT}:{QT+1}], 0"
    def m16(buf, kb, t): return f"v_mfma_f32_32x32x16_bf16 v[{S[buf]+16*t}:{S[buf]+16*t+15}], v[{KM[kb]+4*t}:{KM[kb]+4*t+3}], v[{QM}:{QM+3}], v[{S[buf]+16*t}:{S[buf]+16*t+15}]"
    def pv(buf, vb, i): return f"v_smfmac_f32_32x32x32_bf16 v[{O}:{O+15}], v[{V[vb]+4*i}:{V[vb]+4*i+3}], v[{S[buf]+8*i}:{S[buf]+8*i+7}], v{IDX}"
    def ex(buf, lo, hi):
        for i in range(lo, hi): a(f"v_exp_f32 v{S[buf]+i}, v{S[buf]+i}")
    a("s_waitcnt vmcnt(6)\ns_barrier")
    stamp_mid(a)
    if STAMP: a("s_waitcnt lgkmcnt(0)")
    for r in rdK(0, 0): a(r)
    for r in rdK(1, 1): a(r)
    for r in rdV(0, 0): a(r)
    a("s_waitcnt lgkmcnt(7)")
    a(m2b(0, 0)); a(m16(0, 0, 0)); a(m16(0, 0, 1))
    a(f"s_mov_b32 s46, 0\ns_mov_b32 s47, 0\ns_movk_i32 s49, {SLOT}\ns_nop 7")
    a(".p2align 3\nK2_loop:")
    for it in range(4):
        c = it & 1; n = 1 - c
        ex(c, 0, 2)
        a(pv(n, n, 3))
        a("s_waitcnt lgkmcnt(0)")
        if it == 2:
            a(f"""s_add_u32 s46, s46, 1
            s_add_u32 s47, s47, {SLOT}
            s_cmp_eq_u32 s47, {SLOT*NSLOT}
            s_cselect_b32 s47, 0, s47
            s_cselect_b32 s48, {(-(NSLOT-1)*SLOT) & 0xffffffff}, s49
            s_waitcnt vmcnt(3)
            s_barrier
            v_add_u32 v{AKM}, s48, v{AKM}
            v_add_u32 v{AKT}, s48, v{AKT}""")
        if it == 3:
            a(f"v_add_u32 v{AV}, s48, v{AV}")
        for r in rdK(c, (it + 2) & 3): a(r)
        for r in rdV(n, (it + 1) & 3): a(r)
        ex(c, 2, 6)
        a(m2b(n, n))
        ex(c, 6, 14)
        a(pv(c, c, 0))
        if it == 2: dma()
        ex(c, 14, 18)
        a(pv(c, c, 1))
        ex(c, 18, 22)
        a(m16(n, n, 0))
        ex(c, 22, 26)
        a(m16(n, n, 1))
        ex(c, 26, 30)
        a(pv(c, c, 2))
        ex(c, 30, 32)
    a("s_cmp_lt_u32 s46, 8\ns_cbranch_scc1 K2_loop")
    a(pv(1, 1, 3))
    a(f"""s_mul_i32 s42, s21, 81920
    s_mul_i32 s43, s40, 1280
    s_add_u32 s42, s42, s43
    s_add_u32 s42, s42, {OB}
    v_lshlrev_b32 v11, 3, v10
    s_mov_b32 s48, {hx(2.0**-90)}
    s_mov_b32 s49, {hx(2.0**90)}
    v_cmp_nle_f32 vcc, s48, v{O+12}
    v_cmp_nge_f32 s[50:51], s49, v{O+12}
    s_or_b64 vcc, vcc, s[50:51]
    s_cbranch_vccnz K2_fallback
K2_fin:
    v_rcp_f32 v12, v{O+12}""")
    for i in range(6):
        a(f"v_pk_mul_f32 v[{O+2*i}:{O+2*i+1}], v[{O+2*i}:{O+2*i+1}], v[12:13] op_sel_hi:[1,0]")
    for i in range(6):
        a(f"v_cvt_pk_bf16_f32 v{O+i}, v{O+2*i}, v{O+2*i+1}")
    a(f"""buffer_store_dwordx4 v[{O}:{O+3}], v9, s[16:19], s42 offen
    s_mov_b32 exec_hi, 0
    buffer_store_dwordx2 v[{O+4}:{O+5}], v11, s[16:19], s42 offen offset:1024""")
    stamp_end(a, 1, 16, 2, 3)
    a("K2_exit:\ns_endpgm")
    MX = 14
    a(f"""K2_fallback:
    s_waitcnt vmcnt(0) lgkmcnt(0)
    s_lshl_b32 s43, s26, 9
    v_add_u32 v{AKM}, s43, v9
    v_lshrrev_b32 v12, 5, v0
    v_mul_u32_u24 v13, 2560, v12
    v_lshlrev_b32 v15, 4, v10
    s_xor_b32 s43, s26, 1
    s_lshl_b32 s43, s43, 10
    s_lshl_b32 s46, s26, 3
    s_add_u32 s43, s43, s46
    v_add3_u32 v{AKT}, v13, v15, s43
    v_mul_u32_u24 v13, 320, v12
    v_add_u32 v{AV}, v13, v15
    v_mov_b32 v{MX}, 0xff800000
    s_mov_b32 s46, 0
    s_mov_b32 s47, s28
K2_fb_max:
    buffer_load_dwordx2 v[{KT[0]}:{KT[0]+1}], v{AKT}, s[16:19], s47 offen
    buffer_load_dwordx4 v[{KM[0]}:{KM[0]+3}], v{AKM}, s[16:19], s47 offen
    buffer_load_dwordx4 v[{KM[0]+4}:{KM[0]+7}], v{AKM}, s[16:19], s47 offen offset:2560
    s_waitcnt vmcnt(0)""")
    a(m2b(0, 0)); a(m16(0, 0, 0)); a(m16(0, 0, 1))
    for i in range(16): a(f"v_max3_f32 v{MX}, v{MX}, v{S[0]+2*i}, v{S[0]+2*i+1}")
    a(f"""s_add_u32 s47, s47, 5120
    s_add_u32 s46, s46, 1
    s_cmp_lt_u32 s46, 32
    s_cbranch_scc1 K2_fb_max
    v_mov_b32 v15, v{MX}
    v_permlane32_swap_b32 v15, v{MX}
    v_max_f32 v{MX}, v15, v{MX}""")
    for i in range(16): a(f"v_mov_b32 v{O+i}, 0")
    a(f"""s_mov_b32 s46, 0
    s_mov_b32 s47, s28
    s_mov_b32 s48, s29
K2_fb_pv:
    buffer_load_dwordx2 v[{KT[0]}:{KT[0]+1}], v{AKT}, s[16:19], s47 offen
    buffer_load_dwordx4 v[{KM[0]}:{KM[0]+3}], v{AKM}, s[16:19], s47 offen
    buffer_load_dwordx4 v[{KM[0]+4}:{KM[0]+7}], v{AKM}, s[16:19], s47 offen offset:2560
    s_mov_b64 exec, s[44:45]""")
    for i in range(4): a(f"buffer_load_dwordx4 v[{V[0]+4*i}:{V[0]+4*i+3}], v{AV}, s[16:19], s48 offen offset:{640*i}")
    a("s_mov_b64 exec, -1\ns_waitcnt vmcnt(0)")
    a(m2b(0, 0)); a(m16(0, 0, 0)); a(m16(0, 0, 1))
    for i in range(32): a(f"v_sub_f32 v{S[0]+i}, v{S[0]+i}, v{MX}")
    ex(0, 0, 32)
    for i in range(4): a(pv(0, 0, i))
    a(f"""s_add_u32 s47, s47, 5120
    s_add_u32 s48, s48, 2560
    s_add_u32 s46, s46, 1
    s_cmp_lt_u32 s46, 32
    s_cbranch_scc1 K2_fb_pv
    s_nop 7
    s_branch K2_fin""")
    return dict(name="k2_kernel", lines=a.lines, vgpr=160, grid=256, block=512, lds=SLOT*NSLOT)

def k3():
    a = Asm()
    RED = 106496
    stamp_begin(a)
    a(f"""s_cmp_ge_u32 s2, 256
    s_cbranch_scc1 K3_exit
    s_load_dwordx2 s[4:5], s[0:1], 0
    s_load_dwordx2 s[6:7], s[0:1], 16
    s_load_dwordx2 s[28:29], s[0:1], 32
    s_load_dwordx2 s[24:25], s[0:1], 80
    v_lshrrev_b32 v1, 6, v0
    v_and_b32 v0, 63, v0
    s_and_b32 s21, s2, 7
    v_readfirstlane_b32 s20, v1
    s_lshl_b32 s21, s21, 2
    s_bfe_u32 s22, s2, 0x20003
    s_add_u32 s21, s21, s22
    s_lshr_b32 s22, s2, 5              ; cg (0..7)
    s_and_b32 s26, s20, 3              ; mt
    s_lshr_b32 s27, s20, 2             ; kh
    s_lshl_b32 s30, s20, 6
    v_add_u32 v1, s30, v0              ; U0 = 64*w + l
    s_mul_i32 s31, s22, 160""")
    for j in range(5):
        a(f"""v_add_u32 v2, {512*j}, v1
        v_mul_u32_u24 v3, 6554, v2
        v_lshrrev_b32 v3, 16, v3           ; row = U/10
        v_mul_u32_u24 v4, {1280-160}, v3
        v_lshl_add_u32 v4, v2, 4, v4
        v_add_u32 v{10+j}, s31, v4""")
    a("s_waitcnt lgkmcnt(0)")
    srd(a, 8, 4, 2621440); srd(a, 12, 6, 819200); srd(a, 16, 24, WS_SIZE); srd(a, 32, 28, 1280)
    a(f"""v_and_b32 v5, 15, v0               ; tok
    v_lshrrev_b32 v6, 4, v0            ; kg / g
    s_lshl_b32 s36, s21, 1
    s_lshr_b32 s37, s26, 1
    s_add_u32 s36, s36, s37            ; T
    s_mul_i32 s36, s36, 1280
    s_mul_i32 s37, s27, {16*81920}
    s_add_u32 s36, s36, s37
    s_add_u32 s36, s36, {OB}
    s_and_b32 s37, s26, 1
    s_lshl_b32 s37, s37, 4
    v_add_u32 v7, s37, v5
    v_lshrrev_b32 v2, 1, v6
    v_mul_u32_u24 v2, 81920, v2
    v_and_b32 v3, 1, v6
    v_lshl_add_u32 v2, v3, 9, v2
    v_lshl_add_u32 v8, v7, 4, v2
    v_mul_u32_u24 v2, {2*81920}, v6
    v_lshl_add_u32 v9, v7, 3, v2
    s_lshl_b32 s38, s20, 10
    s_mov_b32 m0, s38
    s_mov_b32 s39, 0""")
    OF = 24
    def odma(j):
        a(f"buffer_load_dwordx4 v{10 + j%5}, s[12:15], s39 offen lds")
        a(f"s_add_u32 m0, m0, 8192")
        if j % 5 == 4: a(f"s_add_u32 s39, s39, {256*1280}")
        else: a("s_nop 0")
    for j in range(13): odma(j)
    a("s_mov_b32 s40, s36")
    for s in range(8):
        a(f"buffer_load_dwordx4 v[{OF+4*s}:{OF+4*s+3}], v8, s[16:19], s40 offen")
        a(f"s_add_u32 s40, s40, {2*81920}")
    for s in range(2):
        for t in range(2):
            a(f"s_add_u32 s40, s36, {(8*s+t)*81920}")
            a(f"buffer_load_dwordx2 v[{OF+32+4*s+2*t}:{OF+33+4*s+2*t}], v9, s[16:19], s40 offen offset:1024")
    XR = 64; WR = 74
    a(f"""s_lshl_b32 s41, s21, 6
    s_lshl_b32 s42, s26, 4
    s_add_u32 s41, s41, s42
    v_add_u32 v15, s41, v5             ; token
    v_mul_u32_u24 v16, 1280, v15
    v_mul_u32_u24 v17, 40, v6
    v_add_u32 v17, s31, v17
    v_add_u32 v16, v16, v17""")
    for j in range(5):
        a(f"buffer_load_dwordx2 v[{XR+2*j}:{XR+2*j+1}], v16, s[8:11], 0 offen offset:{8*j}")
    for j in range(5):
        a(f"buffer_load_dwordx2 v[{WR+2*j}:{WR+2*j+1}], v17, s[32:35], 0 offen offset:{8*j}")
    a(f"""v_bfe_u32 v2, v0, 2, 2             ; r
    v_and_b32 v3, 3, v0                ; c
    v_mul_u32_u24 v3, 40, v3
    v_lshrrev_b32 v4, 1, v6
    v_mul_u32_u24 v4, 20, v4
    v_and_b32 v18, 1, v6
    v_lshl_add_u32 v4, v18, 2, v4
    v_add_u32 v4, v4, v2
    s_mul_i32 s42, s27, 320
    v_add_u32 v4, s42, v4
    v_mul_u32_u24 v4, 160, v4
    v_add_u32 v18, v4, v3
    v_mul_u32_u24 v4, 40, v6
    v_add3_u32 v4, v4, v2, s42
    v_add_u32 v4, 16, v4
    v_mul_u32_u24 v4, 160, v4
    v_add_u32 v19, v4, v3""")
    ACC = 84
    for i in range(20): a(f"v_mov_b32 v{ACC+i}, 0")
    WF = [104, 124]
    def rdW(buf, s):
        out = []
        for j in range(5):
            for t in range(2):
                if s < 8: out.append(f"ds_read_b64_tr_b16 v[{WF[buf]+4*j+2*t}:{WF[buf]+4*j+2*t+1}], v18 offset:{6400*s+1280*t+8*j}")
                else: out.append(f"ds_read_b64_tr_b16 v[{WF[buf]+4*j+2*t}:{WF[buf]+4*j+2*t+1}], v19 offset:{25600*(s-8)+3200*t+8*j}")
        return out
    a("s_waitcnt vmcnt(22)\ns_barrier")
    stamp_mid(a)
    if STAMP: a("s_waitcnt lgkmcnt(0)")
    for r in rdW(0, 0): a(r)
    for s in range(10):
        nO = 12 - (s + 1 if s < 8 else 8 + 2*(s - 7))
        if s < 9:
            for r in rdW((s + 1) & 1, s + 1): a(r)
            a(f"s_waitcnt vmcnt({10 + nO}) lgkmcnt(10)")
        else:
            a(f"s_waitcnt vmcnt({10 + nO}) lgkmcnt(0)")
        for j in range(5):
            a(f"v_mfma_f32_16x16x32_bf16 v[{ACC+4*j}:{ACC+4*j+3}], v[{WF[s&1]+4*j}:{WF[s&1]+4*j+3}], v[{OF+4*s}:{OF+4*s+3}], v[{ACC+4*j}:{ACC+4*j+3}]")
    a(f"""s_mul_i32 s42, s26, 5120
    s_add_u32 s42, s42, {RED}
    v_lshl_add_u32 v2, v0, 4, s42
    s_cmp_eq_u32 s27, 0
    s_cbranch_scc1 K3_fin""")
    for j in range(5): a(f"ds_write_b128 v2, v[{ACC+4*j}:{ACC+4*j+3}] offset:{1024*j}")
    a("s_waitcnt lgkmcnt(0)\ns_barrier")
    stamp_end(a, 2, 16, 2, 3)
    a("s_endpgm\nK3_fin:\ns_barrier")
    for j in range(5): a(f"ds_read_b128 v[{24+4*j}:{27+4*j}], v2 offset:{1024*j}")
    a("s_mov_b32 s33, 0xffff0000\nv_mov_b32 v20, 0\nv_mov_b32 v21, 0\nv_mov_b32 v22, 0\ns_waitcnt vmcnt(0) lgkmcnt(0)")
    for j in range(5):
        for i in range(2):
            r = ACC + 4*j + 2*i; xr = XR + 2*j + i; wr = WR + 2*j + i
            a(f"""v_pk_add_f32 v[{r}:{r+1}], v[{r}:{r+1}], v[{24+4*j+2*i}:{25+4*j+2*i}]
            v_lshlrev_b32 v44, 16, v{xr}
            v_and_b32 v45, s33, v{xr}
            v_pk_add_f32 v[{r}:{r+1}], v[{r}:{r+1}], v[44:45]
            v_cvt_pk_bf16_f32 v{xr}, v{r}, v{r+1}
            v_lshlrev_b32 v46, 16, v{wr}
            v_and_b32 v47, s33, v{wr}
            v_lshlrev_b32 v44, 16, v{xr}
            v_and_b32 v45, s33, v{xr}
            v_add_f32 v20, v20, v44
            v_fmac_f32 v21, v44, v44
            v_fmac_f32 v22, v44, v46
            v_add_f32 v20, v20, v45
            v_fmac_f32 v21, v45, v45
            v_fmac_f32 v22, v45, v47""")
        a(f"s_mov_b32 s43, {HB}\nbuffer_store_dwordx2 v[{XR+2*j}:{XR+2*j+1}], v16, s[16:19], s43 offen offset:{8*j}")
    a(f"""v_mov_b32 v23, 0
    v_permlane32_swap_b32 v20, v22
    v_permlane32_swap_b32 v21, v23
    v_add_f32 v20, v20, v22
    v_add_f32 v21, v21, v23
    v_permlane16_swap_b32 v20, v21
    v_add_f32 v20, v20, v21            ; g0: s1, g1: s2, g2: s3, g3: 0
    v_lshlrev_b32 v2, 4, v15
    v_lshl_add_u32 v2, v6, 2, v2
    s_mov_b32 s43, {ST}
    buffer_atomic_add_f32 v20, v2, s[16:19], s43 offen""")
    stamp_end(a, 2, 16, 2, 3)
    a("K3_exit:\ns_endpgm")
    return dict(name="k3_kernel", lines=a.lines, vgpr=144, grid=256, block=512, lds=RED + 4*5120)

def k4():
    a = Asm()
    UPO = 10240 + 64; RED = 20800
    stamp_begin(a)
    a(f"""s_cmp_ge_u32 s2, 256
    s_cbranch_scc1 K4_exit
    s_load_dwordx2 s[28:29], s[0:1], 32
    s_load_dwordx4 s[4:7], s[0:1], 40
    s_load_dwordx2 s[26:27], s[0:1], 64
    s_load_dwordx2 s[24:25], s[0:1], 80
    v_lshrrev_b32 v1, 6, v0
    v_lshlrev_b32 v2, 4, v0            ; tid*16
    v_readfirstlane_b32 s20, v1
    v_and_b32 v1, 63, v0               ; lane
    s_waitcnt lgkmcnt(0)""")
    srd(a, 8, 4, 1966080); srd(a, 12, 6, 1966080); srd(a, 16, 24, WS_SIZE); srd(a, 32, 28, 1280); srd(a, 36, 26, 2621440)
    STR = 24
    a(f"s_mov_b32 s40, {ST}")
    for i in range(8):
        a(f"buffer_load_dwordx4 v[{STR+4*i}:{STR+4*i+3}], v2, s[16:19], s40 offen\ns_add_u32 s40, s40, 4096")
    a("v_lshlrev_b32 v3, 2, v1")
    for i in range(5): a(f"buffer_load_dword v{56+i}, v3, s[32:35], 0 offen offset:{256*i}")
    HR = 64; SR = 76
    a(f"s_mul_i32 s41, s2, 10240\ns_add_u32 s42, s41, {HB}\ns_lshl_b32 s43, s2, 7\ns_add_u32 s43, s43, {ST}")
    for i in range(3):
        a(f"""v_add_u32 v4, {256*i}, v0
        v_min_u32 v4, 639, v4
        v_lshlrev_b32 v{10+i}, 4, v4
        v_mul_u32_u24 v5, 820, v4
        v_lshrrev_b32 v{13+i}, 16, v5
        v_lshlrev_b32 v5, 4, v{13+i}
        buffer_load_dwordx4 v[{HR+4*i}:{HR+4*i+3}], v{10+i}, s[16:19], s42 offen
        buffer_load_dwordx2 v[{SR+2*i}:{SR+2*i+1}], v5, s[16:19], s43 offen""")
    a(f"""s_lshr_b32 s21, s2, 3
    s_and_b32 s22, s2, 7
    s_mul_i32 s22, s22, 24
    s_add_u32 s22, s22, s21            ; fs
    s_cmp_ge_u32 s21, 24
    s_cbranch_scc1 K4_nodma
    v_mul_u32_u24 v4, 3072, v1
    s_lshl_b32 s44, s22, 4
    s_and_b32 s45, s20, 1
    s_mul_i32 s46, s45, {5*64*3072}
    s_add_u32 s44, s44, s46
    s_mul_i32 s45, s45, 5120
    s_cmp_ge_u32 s20, 2
    s_cbranch_scc1 K4_dmaup
    s_mov_b32 m0, s45""")
    for i in range(5):
        a(f"s_nop 0\nbuffer_load_dwordx4 v4, s[8:11], s44 offen lds\ns_add_u32 m0, m0, 1024\ns_add_u32 s44, s44, {64*3072}")
    a(f"s_branch K4_nodma\nK4_dmaup:\ns_add_u32 m0, s45, {UPO}")
    for i in range(5):
        a(f"s_nop 0\nbuffer_load_dwordx4 v4, s[12:15], s44 offen lds\ns_add_u32 m0, m0, 1024\ns_add_u32 s44, s44, {64*3072}")
    a("K4_nodma:\ns_mov_b32 s33, 0xffff0000\ns_waitcnt vmcnt(0)")
    stamp_mid(a)
    a("v_mov_b32 v6, 0")
    for i in range(5):
        a(f"v_lshlrev_b32 v4, 16, v{56+i}\nv_and_b32 v5, s33, v{56+i}\nv_add_f32 v6, v6, v4\nv_add_f32 v6, v6, v5")
    def wave_sum(v, t):
        a(f"""v_add_f32_dpp v{v}, v{v}, v{v} quad_perm:[1,0,3,2] row_mask:0xf bank_mask:0xf
        v_add_f32_dpp v{v}, v{v}, v{v} quad_perm:[2,3,0,1] row_mask:0xf bank_mask:0xf
        v_add_f32_dpp v{v}, v{v}, v{v} row_half_mirror row_mask:0xf bank_mask:0xf
        v_add_f32_dpp v{v}, v{v}, v{v} row_mirror row_mask:0xf bank_mask:0xf
        v_mov_b32 v{t}, v{v}
        v_permlane16_swap_b32 v{t}, v{v}
        v_add_f32 v{v}, v{v}, v{t}
        v_mov_b32 v{t}, v{v}
        v_permlane32_swap_b32 v{t}, v{v}
        v_add_f32 v{v}, v{v}, v{t}""")
    wave_sum(6, 4)
    a(f"v_mov_b32 v7, 0\nv_mov_b32 v8, 0\ns_mov_b32 s44, {hx(1.0/640)}\ns_mov_b32 s45, 0xfffff800\nv_sub_u32 v9, 2047, v0")
    for i in range(8):
        b = STR + 4*i
        a(f"""v_mul_f32 v{b}, s44, v{b}
        v_mul_f32 v{b+1}, s44, v{b+1}
        v_fma_f32 v{b+1}, -v{b}, v{b}, v{b+1}
        v_max_f32 v{b+1}, 0, v{b+1}
        v_add_f32 v{b+1}, {hx(1e-5)}, v{b+1}
        v_rsq_f32 v{b+1}, v{b+1}
        v_fma_f32 v{b+2}, -v{b}, v6, v{b+2}
        v_mul_f32 v{b+2}, v{b+2}, v{b+1}       ; r
        v_ashrrev_i32 v4, 31, v{b+2}
        v_or_b32 v4, 0x80000000, v4
        v_xor_b32 v4, v4, v{b+2}               ; sortable
        v_subrev_u32 v5, {256*i}, v9
        v_and_or_b32 v4, v4, s45, v5
        v_med3_u32 v8, v7, v8, v4
        v_max_u32 v7, v7, v4""")
    def merge_dpp(mod):
        a(f"""v_mov_b32_dpp v4, v7 {mod} row_mask:0xf bank_mask:0xf
        v_max_u32_dpp v8, v8, v8 {mod} row_mask:0xf bank_mask:0xf
        v_med3_u32 v8, v7, v4, v8
        v_max_u32 v7, v7, v4""")
    for mod in ("quad_perm:[1,0,3,2]", "quad_perm:[2,3,0,1]", "row_half_mirror", "row_mirror"): merge_dpp(mod)
    for sw in ("v_permlane16_swap_b32", "v_permlane32_swap_b32"):
        a(f"""v_mov_b32 v4, v7
        v_mov_b32 v5, v8
        {sw} v4, v7
        {sw} v5, v8
        v_max_u32 v8, v8, v5
        v_med3_u32 v8, v7, v4, v8
        v_max_u32 v7, v7, v4""")
    a(f"""s_lshl_b32 s44, s20, 3
    s_add_u32 s44, s44, {RED}
    v_mov_b32 v4, s44
    v_mov_b32 v16, v7
    v_mov_b32 v17, v8
    ds_write_b64 v4, v[16:17]
    v_mov_b32 v4, {RED}
    s_waitcnt lgkmcnt(0)
    s_barrier
    ds_read_b128 v[16:19], v4
    ds_read_b128 v[20:23], v4 offset:16
    s_waitcnt lgkmcnt(0)
    v_max_u32 v8, v17, v19
    v_med3_u32 v8, v16, v18, v8
    v_max_u32 v7, v16, v18
    v_max_u32 v8, v8, v21
    v_med3_u32 v8, v7, v20, v8
    v_max_u32 v7, v7, v20
    v_max_u32 v8, v8, v23
    v_med3_u32 v8, v7, v22, v8
    v_max_u32 v7, v7, v22
    v_and_b32 v7, 0x7ff, v7
    v_and_b32 v8, 0x7ff, v8
    v_sub_u32 v7, 2047, v7             ; idx0
    v_sub_u32 v8, 2047, v8             ; idx1""")
    BF = 96; AF = 176
    a(f"""s_cmp_ge_u32 s21, 24
    s_cselect_b32 s47, 1, s20
    s_cmp_lg_u32 s47, 0
    s_cbranch_scc1 K4_out
    v_and_b32 v4, 1, v1
    v_cmp_eq_u32 vcc, 0, v4
    v_cndmask_b32 v20, v8, v7, vcc
    v_mul_u32_u24 v21, 1280, v20
    v_lshrrev_b32 v22, 4, v1           ; kg
    v_lshl_add_u32 v21, v22, 4, v21
    v_lshlrev_b32 v23, 4, v20""")
    for i in range(80): a(f"v_mov_b32 v{BF+i}, 0x3f803f80")
    a(f"s_mov_b32 s48, 0x00030003\ns_mov_b32 s49, 0x00030003\ns_mov_b64 exec, s[48:49]\ns_mov_b32 s44, {HB}\ns_mov_b32 s45, {ST}")
    for s in range(20): a(f"buffer_load_dwordx4 v[{BF+4*s}:{BF+4*s+3}], v21, s[16:19], s44 offen offset:{64*s}")
    a(f"""buffer_load_dwordx4 v[88:91], v23, s[16:19], s45 offen
    s_mov_b64 exec, -1
    v_bfe_u32 v4, v1, 2, 2             ; r
    v_lshl_add_u32 v4, v22, 3, v4      ; 8kg + r
    v_lshlrev_b32 v4, 4, v4
    v_and_b32 v5, 1, v1
    v_lshl_add_u32 v4, v5, 3, v4
    v_bfe_u32 v5, v1, 1, 1
    v_mul_u32_u24 v5, {UPO}, v5
    v_add_u32 v4, v4, v5""")
    for s in range(20):
        for t in range(2):
            a(f"ds_read_b64_tr_b16 v[{AF+4*s+2*t}:{AF+4*s+2*t+1}], v4 offset:{512*s+64*t}")
        if s % 4 == 3: a("s_waitcnt lgkmcnt(0)")
    for i in range(4): a(f"v_mov_b32 v{84+i}, 0")
    a("s_waitcnt vmcnt(0) lgkmcnt(0)")
    for s in range(20):
        a(f"v_mfma_f32_16x16x32_bf16 v[84:87], v[{AF+4*s}:{AF+4*s+3}], v[{BF+4*s}:{BF+4*s+3}], v[84:87]")
    a(f"""s_mov_b32 s44, {hx(1.0/640)}
    v_mul_f32 v88, s44, v88            ; mean
    v_mul_f32 v89, s44, v89
    v_fma_f32 v89, -v88, v88, v89
    v_max_f32 v89, 0, v89
    v_add_f32 v89, {hx(1e-5)}, v89
    v_rsq_f32 v89, v89                 ; rstd
    v_fma_f32 v90, -v88, v6, v90
    v_mul_f32 v90, v90, v89            ; r""")
    for i in range(4):
        a(f"""v_mov_b32_dpp v92, v{84+i} quad_perm:[2,2,2,2] row_mask:0xf bank_mask:0xf
        v_fma_f32 v{84+i}, -v88, v92, v{84+i}
        v_mul_f32 v{84+i}, v{84+i}, v89""")
    L2E = 1.4426950408889634
    for i in range(4):
        a(f"""v_mov_b32 v{92+i}, v{84+i}""")
    for i in range(4):
        a(f"v_permlane32_swap_b32 v{92+i}, v{84+i}")
    for i in range(4):
        a(f"""v_mul_f32 v4, {hx(-L2E)}, v{92+i}
        v_exp_f32 v4, v4
        v_add_f32 v4, 1.0, v4
        v_rcp_f32 v4, v4
        v_mul_f32 v4, v4, v{92+i}
        v_mul_f32 v{84+i}, v4, v{84+i}""")
    a(f"""v_cvt_pk_bf16_f32 v84, v84, v85
    v_cvt_pk_bf16_f32 v85, v86, v87
    v_and_b32 v4, 1, v1
    v_mul_u32_u24 v4, 3072, v4
    v_lshl_add_u32 v4, v22, 3, v4
    s_lshl_b32 s44, s22, 4
    s_add_u32 s44, s44, {ACT}
    s_mov_b64 exec, 0x00030003
    buffer_store_dwordx2 v[84:85], v4, s[16:19], s44 offen
    s_cmp_lg_u32 s2, 0
    s_cbranch_scc1 K4_nosel
    s_mov_b64 exec, 3
    v_mul_f32 v90, {hx(-L2E)}, v90
    v_exp_f32 v90, v90
    v_add_f32 v90, 1.0, v90
    v_rcp_f32 v90, v90
    v_mov_b32 v91, v20
    v_lshlrev_b32 v4, 4, v1
    s_mov_b32 s44, {SEL}
    buffer_store_dwordx4 v[88:91], v4, s[16:19], s44 offen
K4_nosel:
    s_mov_b64 exec, -1
K4_out:
    s_mov_b32 s44, {hx(1.0/640)}
    s_lshl_b32 s45, s2, 3""")
    for i in range(3):
        m = SR + 2*i
        a(f"""v_mul_f32 v{m}, s44, v{m}
        v_mul_f32 v{m+1}, s44, v{m+1}
        v_fma_f32 v{m+1}, -v{m}, v{m}, v{m+1}
        v_max_f32 v{m+1}, 0, v{m+1}
        v_add_f32 v{m+1}, {hx(1e-5)}, v{m+1}
        v_rsq_f32 v{m+1}, v{m+1}
        v_add_u32 v{13+i}, s45, v{13+i}
        v_mul_f32 v{m}, -v{m}, v{m+1}
        v_add_f32 v{m+1}, 1.0, v{m+1}""")
        for k in range(4):
            a(f"""v_lshlrev_b32 v4, 16, v{HR+4*i+k}
            v_and_b32 v5, s33, v{HR+4*i+k}
            v_fma_f32 v4, v4, v{m+1}, v{m}
            v_fma_f32 v5, v5, v{m+1}, v{m}
            v_cvt_pk_bf16_f32 v{HR+4*i+k}, v4, v5""")
        a(f"buffer_store_dwordx4 v[{HR+4*i}:{HR+4*i+3}], v{10+i}, s[36:39], s41 offen")
    stamp_end(a, 3, 16, 2, 3)
    a("K4_exit:\ns_endpgm")
    return dict(name="k4_kernel", lines=a.lines, vgpr=256, grid=256, block=256, lds=RED + 64)

def k5():
    a = Asm()
    RED = 49152
    stamp_begin(a)
    a(f"""s_cmp_ge_u32 s2, 40
    s_cbranch_scc1 K5_exit
    s_load_dwordx4 s[4:7], s[0:1], 56
    s_load_dwordx2 s[24:25], s[0:1], 80
    v_lshrrev_b32 v1, 6, v0
    s_and_b32 s22, s2, 7
    v_readfirstlane_b32 s20, v1
    v_and_b32 v0, 63, v0
    s_mul_i32 s22, s22, 5
    s_lshr_b32 s21, s2, 3
    s_add_u32 s22, s22, s21
    v_lshrrev_b32 v2, 1, v0
    v_mul_u32_u24 v2, 1280, v2
    v_and_b32 v3, 1, v0
    v_lshl_add_u32 v2, v3, 4, v2
    s_mul_i32 s26, s20, {384*1280}
    s_lshl_b32 s27, s22, 5
    s_add_u32 s26, s26, s27
    s_mul_i32 s28, s20, 12288
    s_mov_b32 m0, s28
    s_waitcnt lgkmcnt(0)""")
    srd(a, 8, 4, 1966080); srd(a, 12, 6, 2621440); srd(a, 16, 24, WS_SIZE)
    BF = 24; AF = 72
    a(f"""v_lshrrev_b32 v6, 4, v0
    v_mul_u32_u24 v4, 3072, v3
    v_lshl_add_u32 v4, v6, 4, v4
    s_mul_i32 s29, s20, 768
    s_add_u32 s29, s29, {ACT}
    v_lshlrev_b32 v5, 4, v3
    s_mov_b32 s30, {SEL}
    buffer_load_dwordx4 v[16:19], v5, s[16:19], s30 offen""")
    for s in range(12): a(f"buffer_load_dwordx4 v[{BF+4*s}:{BF+4*s+3}], v4, s[16:19], s29 offen offset:{64*s}")
    for s in range(12):
        a(f"buffer_load_dwordx4 v2, s[8:11], s26 offen lds\ns_add_u32 m0, m0, 1024\ns_add_u32 s26, s26, {32*1280}")
    a(f"""v_bfe_u32 v7, v0, 2, 2
    v_lshl_add_u32 v7, v6, 3, v7
    v_lshlrev_b32 v7, 5, v7
    v_and_b32 v8, 3, v0
    v_lshl_add_u32 v7, v8, 3, v7
    v_add_u32 v7, s28, v7
    s_waitcnt vmcnt(24)
    v_mul_u32_u24 v9, 1280, v19
    v_lshl_add_u32 v9, v6, 3, v9
    v_add_u32 v9, s27, v9
    s_mov_b32 s30, {HB}
    buffer_load_dwordx2 v[20:21], v9, s[16:19], s30 offen""")
    for i in range(4): a(f"v_mov_b32 v{12+i}, 0")
    a("s_waitcnt vmcnt(0)")
    stamp_mid(a)
    for s in range(12):
        for t in range(2):
            a(f"ds_read_b64_tr_b16 v[{AF+4*s+2*t}:{AF+4*s+2*t+1}], v7 offset:{1024*s+128*t}")
        if s % 4 == 3: a("s_waitcnt lgkmcnt(0)")
    for s in range(12):
        a(f"v_mfma_f32_16x16x32_bf16 v[12:15], v[{AF+4*s}:{AF+4*s+3}], v[{BF+4*s}:{BF+4*s+3}], v[12:15]")
    a(f"""s_lshl_b32 s29, s20, 10
    s_add_u32 s29, s29, {RED}
    v_lshl_add_u32 v10, v0, 4, s29
    ds_write_b128 v10, v[12:15]
    s_waitcnt lgkmcnt(0)
    s_barrier
    s_cmp_lg_u32 s20, 0
    s_cbranch_scc1 K5_done
    ds_read_b128 v[24:27], v10 offset:1024
    ds_read_b128 v[28:31], v10 offset:2048
    ds_read_b128 v[32:35], v10 offset:3072
    s_mov_b32 s33, 0xffff0000
    v_mul_f32 v16, -v16, v17
    v_add_f32 v17, 1.0, v17
    v_lshlrev_b32 v36, 16, v20
    v_and_b32 v37, s33, v20
    v_lshlrev_b32 v38, 16, v21
    v_and_b32 v39, s33, v21
    s_waitcnt lgkmcnt(0)""")
    for i in range(4):
        a(f"""v_add_f32 v{12+i}, v{12+i}, v{24+i}
        v_add_f32 v{28+i}, v{28+i}, v{32+i}
        v_add_f32 v{12+i}, v{12+i}, v{28+i}
        v_fma_f32 v{36+i}, v{36+i}, v17, v16
        v_fma_f32 v{36+i}, v{12+i}, v18, v{36+i}""")
    a(f"""v_cvt_pk_bf16_f32 v36, v36, v37
    v_cvt_pk_bf16_f32 v37, v38, v39
    s_mov_b32 s30, 0x00030003
    s_mov_b32 s31, 0x00030003
    s_mov_b64 exec, s[30:31]
    buffer_store_dwordx2 v[36:37], v9, s[12:15], 0 offen
K5_done:""")
    stamp_end(a, 4, 16, 2, 3)
    a("K5_exit:\ns_endpgm")
    return dict(name="k5_kernel", lines=a.lines, vgpr=128, grid=40, block=256, lds=RED + 4096)

def emit(kernels, path, verbose=True):
    hdr = open(f"cdna_kernels/{NAME}.s.ref").read().split("; Override launch")[0]
    out = hdr
    for k in kernels:
        out += f"; @launch kernel={k['name']} grid=({k['grid']},1,1) block=({k['block']},1,1) lds={k['lds']}\n"
    out += '.amdgcn_target "amdgcn-amd-amdhsa--gfx950"\n.text\n'
    seen = []
    for k in kernels:
        if k['name'] in seen: continue
        seen.append(k['name'])
        lines = fix_hazards(k['lines'], verbose, k['name'])
        out += f".globl {k['name']}\n.p2align 8\n.type {k['name']},@function\n{k['name']}:\n" + "\n".join(lines) + "\n"
    out += '.section .rodata,"a"\n'
    seen = []
    for k in kernels:
        if k['name'] in seen: continue
        seen.append(k['name'])
        out += f""".p2align 6
.amdhsa_kernel {k['name']}
  .amdhsa_next_free_vgpr {k['vgpr']}
  .amdhsa_next_free_sgpr 96
  .amdhsa_accum_offset {k['vgpr']}
  .amdhsa_group_segment_fixed_size 0
  .amdhsa_kernarg_size 88
  .amdhsa_user_sgpr_count 2
  .amdhsa_user_sgpr_kernarg_segment_ptr 1
  .amdhsa_system_sgpr_workgroup_id_x 1
.end_amdhsa_kernel
"""
    open(path, "w").write(out)

if __name__ == "__main__":
    path = [x for x in sys.argv[1:] if not x.startswith("--")][0]
    emit([k1(), k2(), k3(), k4(), k5()], path)
    if "--empty5" in sys.argv:
        e = dict(name="ke_kernel", lines=["    s_endpgm"], vgpr=8, grid=256, block=256, lds=0)
        emit([k1(), k2(), k3(), k4(), k5(), e, e, e, e, e], path, False)
    if "--dup2" in sys.argv:
        emit([k1(), k2(), k2(), k3(), k4(), k5()], path, False)
    if "--dup1" in sys.argv:
        emit([k1(), k1(), k2(), k3(), k4(), k5()], path, False)
    if "--dup45" in sys.argv:
        emit([k1(), k2(), k3(), k4(), k5(), k4(), k5()], path, False)
    for o in sys.argv:
        if o.startswith("--probe="):
            kid, which = map(int, o.split("=")[1].split(","))
            a = Asm()
            a(f"""s_cmp_ge_u32 s2, 1
            s_cbranch_scc1 KD_exit
            s_load_dwordx2 s[24:25], s[0:1], 80
            v_and_b32 v1, 31, v0
            v_lshlrev_b32 v1, 7, v1
            s_waitcnt lgkmcnt(0)""")
            srd(a, 16, 24, WS_SIZE)
            a(f"""s_mov_b32 s4, {TS}
            s_mov_b32 s5, {TS + max(kid,0)*65536 + 4*which}
            buffer_load_dword v2, v1, s[16:19], s4 offen
            buffer_load_dword v3, v1, s[16:19], s5 offen
            s_waitcnt vmcnt(0)
            v_readlane_b32 s6, v2, 0
            v_readlane_b32 s7, v3, 0""")
            for l in range(1, 32):
                a(f"v_readlane_b32 s8, v2, {l}\nv_readlane_b32 s9, v3, {l}\ns_min_u32 s6, s6, s8\n" + (f"s_max_u32 s7, s7, s9" if which else "s_min_u32 s7, s7, s9"))
            a(f"""s_sub_u32 s7, s7, s6
            s_min_u32 s7, s7, 20000
            s_mul_i32 s7, s7, {4 if kid >= 0 else 0}
            s_add_u32 s7, s7, 20000
KD_spin:
            s_memrealtime s[10:11]
            s_waitcnt lgkmcnt(0)
            s_sub_u32 s10, s10, s6
            s_cmp_lt_u32 s10, s7
            s_cbranch_scc1 KD_spin
KD_exit:
            s_endpgm""")
            d = dict(name="kd_kernel", lines=a.lines, vgpr=8, grid=1, block=64, lds=0)
            emit([k1(), k2(), k3(), k4(), k5(), d], path, False)
```

```python
import sys, struct
sys.path.insert(0, "gen")
from asmlib import Asm, fix_hazards

NAME = "sequential_preLN__mha_block__moe_arch_mod__prompt"
QB = 0x000000; KB = 0x280000; VB = 0x500000; OB = 0x780000; HB = 0xA00000
ST = 0xC80000; ACT = 0xC90000; SEL = 0xC94000; TS = 0xD00000; WS_SIZE = 0xE00000
STAMP = "--stamp" in sys.argv

def f2u(x): return struct.unpack("<I", struct.pack("<f", x))[0]
def hx(x): return hex(f2u(x))

def srd(a, d, b, size):
    a(f"""s_mov_b32 s{d}, s{b}
    s_and_b32 s{d+1}, s{b+1}, 0xffff
    s_mov_b32 s{d+2}, {size}
    s_mov_b32 s{d+3}, 0x20000""")

def stamp_begin(a):
    if STAMP: a("s_memrealtime s[90:91]\ns_memtime s[86:87]\ns_mov_b32 s84, 0")
def stamp_mid(a):
    if STAMP: a("s_memtime s[84:85]")
def stamp_end(a, kid, srdws, vt0, vt1):
    if STAMP:
        a(f"""s_memrealtime s[92:93]
        s_memtime s[88:89]
        s_waitcnt lgkmcnt(0)
        s_sub_u32 s88, s88, s86
        s_sub_u32 s84, s84, s86
        s_lshl_b32 s94, s2, 3
        s_add_u32 s94, s94, s20
        s_lshl_b32 s94, s94, 4
        s_add_u32 s94, s94, {TS + kid*65536}
        v_mov_b32 v4, s90
        v_mov_b32 v5, s92
        v_mov_b32 v6, s88
        v_mov_b32 v7, s84
        s_mov_b64 exec, 1
        buffer_store_dwordx4 v[4:7], off, s[{srdws}:{srdws+3}], s94
        s_waitcnt vmcnt(0)""")

def k1():
    a = Asm()
    SLOT = 32768; WOFF = 16384; STAB = 131072
    stamp_begin(a)
    a(f"""s_cmp_ge_u32 s2, 256
    s_cbranch_scc1 K1_exit
    s_load_dwordx4 s[4:7], s[0:1], 0
    s_load_dwordx2 s[24:25], s[0:1], 80
    v_lshrrev_b32 v1, 6, v0
    v_and_b32 v0, 63, v0
    s_and_b32 s23, s2, 7
    v_readfirstlane_b32 s20, v1
    s_lshr_b32 s26, s2, 3
    s_lshr_b32 s21, s23, 1
    s_lshl_b32 s21, s21, 2
    s_and_b32 s27, s26, 3
    s_add_u32 s21, s21, s27          ; rb
    s_and_b32 s22, s23, 1
    s_lshl_b32 s22, s22, 3
    s_lshr_b32 s27, s26, 2
    s_add_u32 s22, s22, s27          ; cg
    s_waitcnt lgkmcnt(0)""")
    srd(a, 8, 4, 2621440); srd(a, 12, 6, 2457600); srd(a, 16, 24, WS_SIZE)
    a(f"""s_cmp_eq_u32 s22, 15
    s_cbranch_scc1 K1_spare
    s_cmp_lt_u32 s20, 4
    s_cbranch_scc1 K1_consumer""")
    a(f"""s_sub_u32 s26, s20, 4          ; lw
    s_add_u32 s27, s21, s22
    s_cmp_ge_u32 s27, 20
    s_cselect_b32 s28, 20, 0
    s_sub_u32 s27, s27, s28
    s_cmp_ge_u32 s27, 10
    s_cselect_b32 s28, 10, 0
    s_sub_u32 s27, s27, s28            ; kc = (rb+cg)%10
    v_lshrrev_b32 v1, 3, v0            ; r8
    v_and_b32 v2, 7, v0
    v_lshrrev_b32 v3, 1, v1            ; r8>>1
    v_xor_b32 v2, v2, v3
    s_lshl_b32 s28, s21, 7
    s_lshl_b32 s29, s26, 5
    s_add_u32 s28, s28, s29
    v_add_u32 v1, s28, v1              ; row (j=0)
    v_mul_u32_u24 v1, 1280, v1
    v_xor_b32 v3, 4, v2
    v_lshl_add_u32 v10, v2, 4, v1
    v_lshl_add_u32 v11, v3, 4, v1
    v_add_u32 v12, {2*(10240-1024)}, v10
    v_add_u32 v11, {1*(10240-1024)}, v11
    v_add_u32 v13, {2*(10240-1024)}, v11
    v_lshrrev_b32 v1, 4, v0            ; r4
    v_and_b32 v2, 15, v0
    v_lshlrev_b32 v3, 2, v1
    v_xor_b32 v2, v2, v3
    s_lshl_b32 s28, s26, 4
    v_add_u32 v1, s28, v1
    v_mul_u32_u24 v1, 3840, v1
    s_lshl_b32 s28, s22, 8
    v_lshl_add_u32 v1, v2, 4, v1
    v_add_u32 v14, s28, v1
    v_add_u32 v15, {1*(15360-1024)}, v14
    v_add_u32 v16, {2*(15360-1024)}, v14
    v_add_u32 v17, {3*(15360-1024)}, v14
    s_lshl_b32 s30, s26, 12
    s_mov_b32 s31, 0
K1_ld_loop:
    s_cmp_lt_u32 s31, 3
    s_cbranch_scc1 K1_ld_issue
    s_waitcnt vmcnt(16)
    s_barrier
K1_ld_issue:
    s_lshl_b32 s28, s27, 7
    s_mul_i32 s29, s27, {64*3840}
    s_mov_b32 m0, s30
    s_add_u32 s27, s27, 1""")
    for j in range(4):
        a(f"buffer_load_dwordx4 v{10+j}, s[8:11], s28 offen offset:{j*1024} lds")
    a(f"""s_add_u32 m0, s30, {WOFF}
    s_cmp_eq_u32 s27, 10""")
    for j in range(4):
        a(f"buffer_load_dwordx4 v{14+j}, s[12:15], s29 offen offset:{j*1024} lds")
    a(f"""s_cselect_b32 s27, 0, s27
    s_add_u32 s30, s30, {SLOT}
    s_and_b32 s30, s30, {4*SLOT-1}
    s_add_u32 s31, s31, 1
    s_cmp_lt_u32 s31, 10
    s_cbranch_scc1 K1_ld_loop
    s_waitcnt vmcnt(16)
    s_barrier
    s_waitcnt vmcnt(8)
    s_barrier
    s_waitcnt vmcnt(0)
    s_barrier""")
    stamp_end(a, 0, 16, 2, 3)
    a("s_endpgm")
    a(f"""K1_spare:
    s_cmp_ge_u32 s20, 2
    s_cbranch_scc1 K1_exit
    v_lshlrev_b32 v1, 4, v0
    s_lshl_b32 s26, s21, 11
    s_lshl_b32 s27, s20, 10
    s_add_u32 s26, s26, s27
    s_add_u32 s26, s26, {ST}
    v_mov_b32 v4, 0
    v_mov_b32 v5, 0
    v_mov_b32 v6, 0
    v_mov_b32 v7, 0
    buffer_store_dwordx4 v[4:7], v1, s[16:19], s26 offen
K1_exit:
    s_endpgm""")
    a(f"""K1_consumer:
    s_lshr_b32 s26, s20, 1             ; tw
    s_and_b32 s27, s20, 1              ; fw
    v_and_b32 v17, 31, v0              ; n
    v_lshrrev_b32 v18, 5, v0           ; hh
    v_bfe_u32 v19, v0, 1, 3            ; (n>>1)&7
    v_xor_b32 v19, v19, v18
    v_lshlrev_b32 v19, 4, v19
    v_lshl_add_u32 v19, v17, 7, v19
    s_lshl_b32 s28, s20, 12            ; (2tw+fw)*4096
    v_add_u32 v2, s28, v19
    v_xor_b32 v3, 32, v2
    v_xor_b32 v4, 64, v2
    v_xor_b32 v5, 96, v2
    v_xor_b32 v6, 4096, v2
    v_xor_b32 v7, 4096, v3
    v_xor_b32 v8, 4096, v4
    v_xor_b32 v9, 4096, v5
    v_bfe_u32 v19, v0, 2, 2            ; r
    v_bfe_u32 v20, v0, 4, 1            ; mhalf
    v_and_b32 v21, 1, v0               ; c0
    v_bfe_u32 v22, v0, 1, 1            ; c1
    s_cmp_ge_u32 s22, 10
    s_cselect_b64 s[30:31], -1, 0
    v_cndmask_b32 v23, v21, v22, s[30:31]
    v_cndmask_b32 v62, v22, v21, s[30:31]
    v_lshl_add_u32 v23, v20, 1, v23
    s_lshl_b32 s28, s27, 1
    s_add_u32 s28, s28, s26
    v_xor_b32 v63, s28, v19
    v_lshl_add_u32 v23, v63, 2, v23           ; slot
    v_lshlrev_b32 v23, 4, v23
    v_lshl_add_u32 v23, v62, 3, v23
    v_lshl_add_u32 v19, v18, 3, v19           ; 8hh + r
    v_lshl_add_u32 v23, v19, 8, v23
    v_add_u32 v10, {WOFF}, v23
    v_xor_b32 v11, 64, v10
    ; smfmac constants: row=l%16 -> fr=row>>2, par=(row>>1)&1, pp=row&1 ; on if row<8 && (l>>5)==fr && (reg>>1)==par
    v_bfe_u32 v19, v0, 2, 2            ; row>>2 (0..3)
    v_cmp_eq_u32 vcc, v19, v18
    v_mov_b32 v20, 0x3f803f80
    v_cndmask_b32 v20, 0, v20, vcc
    v_cmp_eq_u32 vcc, 0, v22
    v_mov_b32 v16, 0xeeee
    v_mov_b32 v19, 0x4444
    v_cndmask_b32 v12, 0, v20, vcc
    v_cndmask_b32 v14, v20, 0, vcc
    v_cmp_eq_u32 vcc, 0, v21
    v_mov_b32 v13, v12
    v_mov_b32 v15, v14
    v_cndmask_b32 v16, v16, v19, vcc""")
    for i in range(56, 62): a(f"v_mov_b32 v{i}, 0")
    for i in range(64, 128): a(f"v_mov_b32 v{i}, 0")
    def reads(p, ks):
        b = 24 + 16*p
        return [f"ds_read_b128 v[{b}:{b+3}], v{2+ks}",
                f"ds_read_b64_tr_b16 v[{b+4}:{b+5}], v10 offset:{ks*4096}",
                f"ds_read_b64_tr_b16 v[{b+6}:{b+7}], v10 offset:{ks*4096+1024}",
                f"ds_read_b128 v[{b+8}:{b+11}], v{6+ks}",
                f"ds_read_b64_tr_b16 v[{b+12}:{b+13}], v11 offset:{ks*4096}",
                f"ds_read_b64_tr_b16 v[{b+14}:{b+15}], v11 offset:{ks*4096+1024}"]
    a(f"s_mov_b32 s29, 0\ns_mov_b32 s32, {SLOT}\ns_mov_b32 s33, 0xffff0000\ns_barrier")
    stamp_mid(a)
    for r in reads(0, 0): a(r)
    a("s_cmp_ge_u32 s22, 10\ns_cbranch_scc1 K1_loopV")
    for vt in (0, 1):
        L = "K1_loopV" if vt else "K1_loopQ"
        a(f".p2align 3\n{L}:")
        for ks in range(4):
            p = ks & 1; b = 24 + 16*p
            X = [f"v[{b}:{b+3}]", f"v[{b+8}:{b+11}]"]; W = [f"v[{b+4}:{b+7}]", f"v[{b+12}:{b+15}]"]
            a("s_waitcnt lgkmcnt(0)")
            upd = []
            if ks == 3:
                a(f"""s_add_u32 s29, s29, 1
                s_and_b32 s28, s29, 3
                s_cselect_b32 s28, s32, {(-3*SLOT) & 0xffffffff}
                s_barrier
                v_add_u32 v2, s28, v2
                v_add_u32 v10, s28, v10
                v_add_u32 v6, s28, v6
                v_add_u32 v11, s28, v11""")
                upd = [f"v_add_u32 v{i}, s28, v{i}" for i in (3, 7, 4, 8, 5, 9)]
            rd = reads(1 - p, (ks + 1) & 3)
            sq = []
            for i in range(4):
                sq += [f"v_lshlrev_b32 v62, 16, v{b+i}", f"v_and_b32 v63, s33, v{b+i}", "v_fmac_f32 v60, v62, v62", "v_fmac_f32 v61, v63, v63"]
            mf = []
            for (aa, bb) in ((0, 0), (0, 1), (1, 1), (1, 0)):
                acc = 64 + 16*(2*aa + bb)
                o = (X[aa], W[bb]) if vt else (W[bb], X[aa])
                mf.append(f"v_mfma_f32_32x32x16_bf16 v[{acc}:{acc+15}], {o[0]}, {o[1]}, v[{acc}:{acc+15}]")
            a(mf[0]); a(rd[0]); a(rd[1]); a(rd[2])
            for s in sq[0:4]: a(s)
            a(mf[1]); a(rd[3]); a(rd[4]); a(rd[5])
            for s in sq[4:8]: a(s)
            a(mf[2])
            for s in sq[8:12] + upd[0:2]: a(s)
            a(mf[3])
            for s in sq[12:16] + upd[2:4]: a(s)
            a(f"v_smfmac_f32_16x16x64_bf16 v[56:59], v[12:15], v[{b}:{b+7}], v16")
            for s in upd[4:6]: a(s)
        a(f"s_cmp_lt_u32 s29, 10\ns_cbranch_scc1 {L}")
        if not vt: a("s_branch K1_epi")
    qscale = 1.4426950408889634 * (20 ** -0.5)
    a(f"""K1_epi:
    v_add_f32 v60, v60, v61
    v_mov_b32 v61, v60
    s_cmp_lt_u32 s22, 5
    s_cselect_b32 s34, {hx(qscale)}, 1.0
    v_permlane32_swap_b32 v60, v61
    v_add_f32 v60, v60, v61            ; sumsq (all lanes: token l%32)
    v_add_f32 v56, v56, v57
    v_add_f32 v58, v58, v59
    v_permlane16_swap_b32 v56, v58
    v_mul_f32 v56, {hx(1.0/640)}, v56  ; mean
    v_mul_f32 v60, {hx(1.0/640)}, v60
    v_fma_f32 v60, -v56, v56, v60      ; var
    v_max_f32 v60, 0, v60
    v_add_f32 v60, {hx(1e-5)}, v60
    v_rsq_f32 v60, v60
    v_mul_f32 v60, s34, v60            ; A
    v_mul_f32 v61, -v56, v60
    s_lshl_b32 s28, s20, 7
    s_add_u32 s28, s28, {STAB}
    v_lshl_add_u32 v62, v17, 2, s28
    s_lshl_b32 s30, s27, 1
    s_add_u32 s30, s30, s26
    s_lshl_b32 s31, s30, 7
    s_add_u32 s31, s31, {STAB}
    v_lshl_add_u32 v63, v17, 2, s31
    s_waitcnt lgkmcnt(0)
    s_mov_b32 exec_hi, 0
    ds_write_b32 v62, v60
    ds_write_b32 v62, v61 offset:512
    ds_write_b32 v63, v58 offset:1024
    s_mov_b64 exec, -1
    ; T values
    s_lshl_b32 s35, s21, 2
    s_add_u32 s35, s35, s20            ; T for a'=0
    s_xor_b32 s36, s35, 1              ; T for a'=1
    s_cmp_ge_u32 s22, 10
    s_cbranch_scc1 K1_epiV""")
    a(f"""s_mul_i32 s35, s35, 2560
    s_mul_i32 s36, s36, 2560
    s_cmp_ge_u32 s22, 5
    s_cselect_b32 s37, 5, 0
    s_cselect_b32 s38, {KB}, {QB}
    s_cselect_b64 s[40:41], -1, 0
    s_sub_u32 s37, s22, s37            ; cgl
    s_add_u32 s35, s35, s38
    s_add_u32 s36, s36, s38
    ; m = K ? swap23(n) : n
    v_and_b32 v19, 0x13, v17
    v_bfe_u32 v20, v17, 2, 1
    v_bfe_u32 v21, v17, 3, 1
    v_lshl_add_u32 v19, v20, 3, v19
    v_lshl_add_u32 v19, v21, 2, v19
    v_cndmask_b32 v19, v17, v19, s[40:41]
    v_lshlrev_b32 v19, 4, v19          ; m*16
    s_lshl_b32 s37, s37, 4""")
    for bb in range(2):
        for half in range(2):
            d = 2 + 2*bb + half
            a(f"""s_xor_b32 s39, s30, {bb}
            s_lshl_b32 s39, s39, 2
            s_add_u32 s39, s39, s37
            s_add_u32 s39, s39, {2*half}
            v_add_u32 v20, s39, v18            ; U
            v_mul_u32_u24 v21, 205, v20
            v_lshrrev_b32 v21, 10, v21         ; hp = U/5
            v_mul_u32_u24 v22, {163840 - 5*512}, v21
            v_lshl_add_u32 v22, v20, 9, v22
            v_add_u32 v{d}, v22, v19""")
    a(f"""v_xor_b32 v6, 128, v62
    v_lshl_add_u32 v7, v18, 4, s31
    v_xor_b32 v8, 128, v7
    s_waitcnt lgkmcnt(0)
    s_barrier
    ds_read_b32 v10, v62
    ds_read_b32 v12, v62 offset:512
    ds_read_b32 v14, v6
    ds_read_b32 v16, v6 offset:512""")
    for bb in range(2):
        for g in range(4):
            a(f"ds_read_b128 v[{24+16*bb+4*g}:{27+16*bb+4*g}], v{7+bb} offset:{1024+32*g}")
    a("s_waitcnt lgkmcnt(0)")
    for aa in range(2):
        for bb in range(2):
            acc = 64 + 16*(2*aa + bb)
            A = 10 + 4*aa; B = 12 + 4*aa
            for half in range(2):
                for i in range(4):
                    r = 8*half + 2*i
                    a(f"v_pk_mul_f32 v[{acc+r}:{acc+r+1}], v[{acc+r}:{acc+r+1}], v[{A}:{A+1}] op_sel_hi:[1,0]")
                for i in range(4):
                    r = 8*half + 2*i
                    a(f"v_pk_fma_f32 v[{acc+r}:{acc+r+1}], v[{24+16*bb+r}:{25+16*bb+r}], v[{B}:{B+1}], v[{acc+r}:{acc+r+1}] op_sel_hi:[1,0,1]")
                for i in range(4):
                    r = 8*half + 2*i
                    a(f"v_cvt_pk_bf16_f32 v{acc+8*half+i}, v{acc+r}, v{acc+r+1}")
                a(f"buffer_store_dwordx4 v[{acc+8*half}:{acc+8*half+3}], v{2+2*bb+half}, s[16:19], s{35+aa} offen")
    stamp_end(a, 0, 16, 2, 3)
    a("s_endpgm")
    a(f"""K1_epiV:
    s_mul_i32 s35, s35, 1280
    s_mul_i32 s36, s36, 1280
    s_add_u32 s35, s35, {VB}
    s_add_u32 s36, s36, {VB}
    s_sub_u32 s37, s22, 10
    s_lshl_b32 s37, s37, 7
    v_mul_u32_u24 v19, 320, v18""")
    for bb in range(2):
        a(f"""s_xor_b32 s39, s30, {bb}
        s_lshl_b32 s39, s39, 5
        s_add_u32 s39, s39, s37
        v_add_u32 v20, s39, v17            ; col
        v_mul_u32_u24 v21, 3277, v20
        v_lshrrev_b32 v21, 16, v21
        v_mul_u32_u24 v22, {81920 - 320}, v21
        v_lshl_add_u32 v22, v20, 4, v22
        v_add_u32 v{2+bb}, v22, v19""")
    a(f"""v_xor_b32 v6, 128, v63
    v_lshl_add_u32 v7, v18, 4, s28
    v_xor_b32 v8, 128, v7
    s_waitcnt lgkmcnt(0)
    s_barrier
    ds_read_b32 v10, v63 offset:1024
    ds_read_b32 v12, v6 offset:1024""")
    for aa in range(2):
        for g in range(4):
            a(f"ds_read_b128 v[{24+4*g}:{27+4*g}], v{7+aa} offset:{32*g}")
            a(f"ds_read_b128 v[{40+4*g}:{43+4*g}], v{7+aa} offset:{512+32*g}")
        a("s_waitcnt lgkmcnt(0)")
        for bb in range(2):
            acc = 64 + 16*(2*aa + bb)
            C = 10 + 2*bb
            for half in range(2):
                for i in range(4):
                    r = 8*half + 2*i
                    a(f"v_pk_mul_f32 v[{acc+r}:{acc+r+1}], v[{acc+r}:{acc+r+1}], v[{24+r}:{25+r}]")
                for i in range(4):
                    r = 8*half + 2*i
                    a(f"v_pk_fma_f32 v[{acc+r}:{acc+r+1}], v[{40+r}:{41+r}], v[{C}:{C+1}], v[{acc+r}:{acc+r+1}] op_sel_hi:[1,0,1]")
                for i in range(4):
                    r = 8*half + 2*i
                    a(f"v_cvt_pk_bf16_f32 v{acc+8*half+i}, v{acc+r}, v{acc+r+1}")
                a(f"buffer_store_dwordx4 v[{acc+8*half}:{acc+8*half+3}], v{2+bb}, s[16:19], s{35+aa} offen offset:{640*half}")
    stamp_end(a, 0, 16, 2, 3)
    a("s_endpgm")
    return dict(name="k1_kernel", lines=a.lines, vgpr=128, grid=256, block=512, lds=STAB + 2048)

X = set()
for _o in sys.argv:
    if _o.startswith('--x='): X |= set(_o[4:].split(','))
def k2():
    a = Asm()
    SLOT = 22528; NSLOT = 4; VOFF = 12288
    S = [0+16, 32+16]
    O = 80
    QM = 96; QT = 100
    KM = [104, 112]
    KT = [102, 120]
    V = [124, 140]
    AKM, AKT, AV, IDX = 2, 3, 4, 5
    D0 = 6
    stamp_begin(a)
    a(f"""s_cmp_ge_u32 s2, 256
    s_cbranch_scc1 K2_exit
    s_load_dwordx2 s[24:25], s[0:1], 80
    v_lshrrev_b32 v1, 6, v0
    v_and_b32 v0, 63, v0
    s_and_b32 s21, s2, 7
    v_readfirstlane_b32 s20, v1
    s_lshl_b32 s21, s21, 2
    s_bfe_u32 s22, s2, 0x20003
    s_add_u32 s21, s21, s22            ; head
    s_lshr_b32 s22, s2, 5              ; qb
    s_lshr_b32 s23, s21, 1             ; hp
    s_and_b32 s26, s21, 1              ; odd
    s_mul_i32 s27, s23, 163840
    s_lshl_b32 s28, s26, 10
    s_add_u32 s28, s28, s27
    s_add_u32 s28, s28, {KB}
    s_mul_i32 s29, s21, 81920
    s_add_u32 s29, s29, {VB}
    v_lshlrev_b32 v9, 4, v0            ; lane*16""")
    a(f"""s_lshl_b32 s30, s20, 10
    v_add_u32 v10, s30, v9             ; b = 1024*i0 + 16*l
    v_lshrrev_b32 v11, 9, v10
    v_mul_u32_u24 v11, 43, v11
    v_lshrrev_b32 v11, 7, v11          ; tile = b/1536
    v_lshl_add_u32 v{D0}, v11, 10, v10
    v_add_u32 v10, 8192, v10
    v_lshrrev_b32 v11, 9, v10
    v_mul_u32_u24 v11, 43, v11
    v_lshrrev_b32 v11, 7, v11
    v_lshl_add_u32 v11, v11, 10, v10
    v_subrev_u32 v12, {VOFF}, v10
    s_movk_i32 s38, 10240
    s_cmp_lt_u32 s20, 4
    s_cselect_b64 s[32:33], -1, 0
    s_cselect_b32 s35, s28, s29        ; soffset i1
    s_cselect_b32 s38, 20480, s38      ; stride i1
    v_cndmask_b32 v{D0+1}, v12, v11, s[32:33]
    s_add_u32 s31, s20, 16
    s_min_u32 s31, s31, 21
    s_lshl_b32 s31, s31, 10
    s_sub_u32 s39, s31, {VOFF}
    v_add_u32 v{D0+2}, s39, v9
    s_mov_b32 s34, s28                 ; soffset i0
    s_mov_b32 s36, s29                 ; soffset i2
    s_mov_b32 s37, 0
    s_waitcnt lgkmcnt(0)""")
    srd(a, 16, 24, WS_SIZE)
    def dma():
        a(f"""s_add_u32 m0, s37, s30
        s_add_u32 s39, s37, s31
        buffer_load_dwordx4 v{D0}, s[16:19], s34 offen lds
        s_add_u32 m0, m0, 8192
        s_add_u32 s34, s34, 20480
        buffer_load_dwordx4 v{D0+1}, s[16:19], s35 offen lds
        s_mov_b32 m0, s39
        s_add_u32 s35, s35, s38
        buffer_load_dwordx4 v{D0+2}, s[16:19], s36 offen lds
        s_add_u32 s36, s36, 10240
        s_add_u32 s37, s37, {SLOT}
        s_cmp_eq_u32 s37, {SLOT*NSLOT}
        s_cselect_b32 s37, 0, s37""")
    dma()
    a(f"""s_lshl_b32 s40, s22, 3
    s_add_u32 s40, s40, s20            ; T
    s_mul_i32 s41, s40, 2560
    s_add_u32 s41, s41, s27            ; QB=0
    s_mul_i32 s42, s26, 1536
    s_add_u32 s42, s42, s41
    buffer_load_dwordx4 v[{QM}:{QM+3}], v9, s[16:19], s42 offen
    v_and_b32 v10, 31, v0
    v_lshlrev_b32 v11, 4, v10
    s_lshl_b32 s42, s26, 3
    s_add_u32 s42, s42, s41
    buffer_load_dwordx2 v[{QT}:{QT+1}], v11, s[16:19], s42 offen offset:1024""")
    dma(); dma()
    a(f"""; LDS read addresses
    s_lshl_b32 s42, s26, 9
    v_add_u32 v{AKM}, s42, v9
    v_lshrrev_b32 v12, 5, v0
    v_mul_u32_u24 v13, 1536, v12
    s_xor_b32 s42, s26, 1
    s_lshl_b32 s42, s42, 10
    s_lshl_b32 s43, s26, 3
    s_add_u32 s42, s42, s43
    v_add3_u32 v{AKT}, v13, v11, s42
    v_mul_u32_u24 v13, 320, v12
    s_movk_i32 s42, {VOFF}
    v_add3_u32 v{AV}, v13, v11, s42
    v_mov_b32 v{IDX}, 0xdddddddd
    s_mov_b32 s44, 0x000fffff
    s_mov_b32 s45, 0x000fffff""")
    for i in range(16):
        a(f"v_mov_b32 v{O+i}, 0")
        a(f"v_mov_b32 v{V[0]+i}, 0x3f803f80")
        a(f"v_mov_b32 v{V[1]+i}, 0x3f803f80")
    if "vzero" in X:
        a("s_mov_b32 exec_lo, 0xeeefffff\ns_mov_b32 exec_hi, 0xeeefffff")
        for i in range(16):
            a(f"v_mov_b32 v{V[0]+i}, 0")
            a(f"v_mov_b32 v{V[1]+i}, 0")
        a("s_mov_b64 exec, -1")
    for i in range(8): a(f"v_mov_b32 v{S[1]+24+i}, 0")
    def rdK(buf, pl):
        return [f"ds_read_b64 v[{KT[buf]}:{KT[buf]+1}], v{AKT} offset:{pl*3072}",
                f"ds_read_b128 v[{KM[buf]}:{KM[buf]+3}], v{AKM} offset:{pl*3072}",
                f"ds_read_b128 v[{KM[buf]+4}:{KM[buf]+7}], v{AKM} offset:{pl*3072+1536}"]
    def rdV(buf, pl):
        return ["s_mov_b64 exec, s[44:45]"] + [f"ds_read_b128 v[{V[buf]+4*i}:{V[buf]+4*i+3}], v{AV} offset:{pl*2560+640*i}" for i in range(4)] + ["s_mov_b64 exec, -1"]
    def m2b(buf, kb): return f"v_mfma_f32_32x32x4_2b_bf16 v[{S[buf]}:{S[buf]+31}], v[{KT[kb]}:{KT[kb]+1}], v[{QT}:{QT+1}], 0"
    def m16(buf, kb, t): return f"v_mfma_f32_32x32x16_bf16 v[{S[buf]+16*t}:{S[buf]+16*t+15}], v[{KM[kb]+4*t}:{KM[kb]+4*t+3}], v[{QM}:{QM+3}], v[{S[buf]+16*t}:{S[buf]+16*t+15}]"
    def pv(buf, vb, i): return f"v_smfmac_f32_32x32x32_bf16 v[{O}:{O+15}], v[{V[vb]+4*i}:{V[vb]+4*i+3}], v[{S[buf]+8*i}:{S[buf]+8*i+7}], v{IDX}"
    def ex(buf, lo, hi):
        if "noexp" in X: return
        for i in range(lo, hi): a(f"v_exp_f32 v{S[buf]+i}, v{S[buf]+i}")
    if "noqk" in X:
        m2b = lambda *x: "s_nop 0"
        m16 = lambda *x: "s_nop 0"
    if "nopv" in X:
        pv = lambda *x: "s_nop 0"
    if "nods" in X:
        rdK = lambda *x: []
        rdV = lambda *x: []
    a("s_waitcnt vmcnt(6)\ns_barrier")
    stamp_mid(a)
    if STAMP: a("s_waitcnt lgkmcnt(0)")
    for r in rdK(0, 0): a(r)
    for r in rdK(1, 1): a(r)
    for r in rdV(0, 0): a(r)
    a("s_waitcnt lgkmcnt(7)")
    a(m2b(0, 0)); a(m16(0, 0, 0)); a(m16(0, 0, 1))
    a(f"s_mov_b32 s46, 0\ns_mov_b32 s47, 0\ns_movk_i32 s49, {SLOT}\ns_nop 7")
    a(".p2align 3\nK2_loop:")
    for it in range(4):
        c = it & 1; n = 1 - c
        ex(c, 0, 2)
        a(pv(n, n, 3))
        a("s_waitcnt lgkmcnt(0)")
        if it == 2:
            a(f"""s_add_u32 s46, s46, 1
            s_add_u32 s47, s47, {SLOT}
            s_cmp_eq_u32 s47, {SLOT*NSLOT}
            s_cselect_b32 s47, 0, s47
            s_cselect_b32 s48, {(-(NSLOT-1)*SLOT) & 0xffffffff}, s49
            s_waitcnt vmcnt(3)
            s_barrier
            v_add_u32 v{AKM}, s48, v{AKM}
            v_add_u32 v{AKT}, s48, v{AKT}""")
        if it == 3:
            a(f"v_add_u32 v{AV}, s48, v{AV}")
        for r in rdK(c, (it + 2) & 3): a(r)
        for r in rdV(n, (it + 1) & 3): a(r)
        ex(c, 2, 6)
        a(m2b(n, n))
        ex(c, 6, 14)
        a(pv(c, c, 0))
        if it == 2: dma()
        ex(c, 14, 18)
        a(pv(c, c, 1))
        ex(c, 18, 22)
        a(m16(n, n, 0))
        ex(c, 22, 26)
        a(m16(n, n, 1))
        ex(c, 26, 30)
        a(pv(c, c, 2))
        ex(c, 30, 32)
    a("s_cmp_lt_u32 s46, 8\ns_cbranch_scc1 K2_loop")
    a(pv(1, 1, 3))
    a(f"""s_mul_i32 s42, s21, 81920
    s_mul_i32 s43, s40, 1280
    s_add_u32 s42, s42, s43
    s_add_u32 s42, s42, {OB}
    v_lshlrev_b32 v11, 3, v10
    s_mov_b32 s48, {hx(2.0**-90)}
    s_mov_b32 s49, {hx(2.0**90)}
    v_cmp_nle_f32 vcc, s48, v{O+12}
    v_cmp_nge_f32 s[50:51], s49, v{O+12}
    s_or_b64 vcc, vcc, s[50:51]
    {"s_nop 0" if X else "s_cbranch_vccnz K2_fallback"}
K2_fin:
    v_rcp_f32 v12, v{O+12}""")
    for i in range(6):
        a(f"v_pk_mul_f32 v[{O+2*i}:{O+2*i+1}], v[{O+2*i}:{O+2*i+1}], v[12:13] op_sel_hi:[1,0]")
    for i in range(6):
        a(f"v_cvt_pk_bf16_f32 v{O+i}, v{O+2*i}, v{O+2*i+1}")
    a(f"""buffer_store_dwordx4 v[{O}:{O+3}], v9, s[16:19], s42 offen
    s_mov_b32 exec_hi, 0
    buffer_store_dwordx2 v[{O+4}:{O+5}], v11, s[16:19], s42 offen offset:1024""")
    stamp_end(a, 1, 16, 2, 3)
    a("K2_exit:\ns_endpgm")
    MX = 14
    a(f"""K2_fallback:
    s_waitcnt vmcnt(0) lgkmcnt(0)
    s_lshl_b32 s43, s26, 9
    v_add_u32 v{AKM}, s43, v9
    v_lshrrev_b32 v12, 5, v0
    v_mul_u32_u24 v13, 2560, v12
    v_lshlrev_b32 v15, 4, v10
    s_xor_b32 s43, s26, 1
    s_lshl_b32 s43, s43, 10
    s_lshl_b32 s46, s26, 3
    s_add_u32 s43, s43, s46
    v_add3_u32 v{AKT}, v13, v15, s43
    v_mul_u32_u24 v13, 320, v12
    v_add_u32 v{AV}, v13, v15
    v_mov_b32 v{MX}, 0xff800000
    s_mov_b32 s46, 0
    s_mov_b32 s47, s28
K2_fb_max:
    buffer_load_dwordx2 v[{KT[0]}:{KT[0]+1}], v{AKT}, s[16:19], s47 offen
    buffer_load_dwordx4 v[{KM[0]}:{KM[0]+3}], v{AKM}, s[16:19], s47 offen
    buffer_load_dwordx4 v[{KM[0]+4}:{KM[0]+7}], v{AKM}, s[16:19], s47 offen offset:2560
    s_waitcnt vmcnt(0)""")
    a(m2b(0, 0)); a(m16(0, 0, 0)); a(m16(0, 0, 1))
    for i in range(16): a(f"v_max3_f32 v{MX}, v{MX}, v{S[0]+2*i}, v{S[0]+2*i+1}")
    a(f"""s_add_u32 s47, s47, 5120
    s_add_u32 s46, s46, 1
    s_cmp_lt_u32 s46, 32
    s_cbranch_scc1 K2_fb_max
    v_mov_b32 v15, v{MX}
    v_permlane32_swap_b32 v15, v{MX}
    v_max_f32 v{MX}, v15, v{MX}""")
    for i in range(16): a(f"v_mov_b32 v{O+i}, 0")
    a(f"""s_mov_b32 s46, 0
    s_mov_b32 s47, s28
    s_mov_b32 s48, s29
K2_fb_pv:
    buffer_load_dwordx2 v[{KT[0]}:{KT[0]+1}], v{AKT}, s[16:19], s47 offen
    buffer_load_dwordx4 v[{KM[0]}:{KM[0]+3}], v{AKM}, s[16:19], s47 offen
    buffer_load_dwordx4 v[{KM[0]+4}:{KM[0]+7}], v{AKM}, s[16:19], s47 offen offset:2560
    s_mov_b64 exec, s[44:45]""")
    for i in range(4): a(f"buffer_load_dwordx4 v[{V[0]+4*i}:{V[0]+4*i+3}], v{AV}, s[16:19], s48 offen offset:{640*i}")
    a("s_mov_b64 exec, -1\ns_waitcnt vmcnt(0)")
    a(m2b(0, 0)); a(m16(0, 0, 0)); a(m16(0, 0, 1))
    for i in range(32): a(f"v_sub_f32 v{S[0]+i}, v{S[0]+i}, v{MX}")
    ex(0, 0, 32)
    for i in range(4): a(pv(0, 0, i))
    a(f"""s_add_u32 s47, s47, 5120
    s_add_u32 s48, s48, 2560
    s_add_u32 s46, s46, 1
    s_cmp_lt_u32 s46, 32
    s_cbranch_scc1 K2_fb_pv
    s_nop 7
    s_branch K2_fin""")
    return dict(name="k2_kernel", lines=a.lines, vgpr=160, grid=256, block=512, lds=SLOT*NSLOT)

def k3():
    a = Asm()
    RED = 106496
    stamp_begin(a)
    a(f"""s_cmp_ge_u32 s2, 256
    s_cbranch_scc1 K3_exit
    s_load_dwordx2 s[4:5], s[0:1], 0
    s_load_dwordx2 s[6:7], s[0:1], 16
    s_load_dwordx2 s[28:29], s[0:1], 32
    s_load_dwordx2 s[24:25], s[0:1], 80
    v_lshrrev_b32 v1, 6, v0
    v_and_b32 v0, 63, v0
    s_and_b32 s21, s2, 7
    v_readfirstlane_b32 s20, v1
    s_lshl_b32 s21, s21, 2
    s_bfe_u32 s22, s2, 0x20003
    s_add_u32 s21, s21, s22
    s_lshr_b32 s22, s2, 5              ; cg (0..7)
    s_and_b32 s26, s20, 3              ; mt
    s_lshr_b32 s27, s20, 2             ; kh
    s_lshl_b32 s30, s20, 6
    v_add_u32 v1, s30, v0              ; U0 = 64*w + l
    s_mul_i32 s31, s22, 160""")
    for j in range(5):
        a(f"""v_add_u32 v2, {512*j}, v1
        v_mul_u32_u24 v3, 6554, v2
        v_lshrrev_b32 v3, 16, v3           ; row = U/10
        v_mul_u32_u24 v4, {1280-160}, v3
        v_lshl_add_u32 v4, v2, 4, v4
        v_add_u32 v{10+j}, s31, v4""")
    a("s_waitcnt lgkmcnt(0)")
    srd(a, 8, 4, 2621440); srd(a, 12, 6, 819200); srd(a, 16, 24, WS_SIZE); srd(a, 32, 28, 1280)
    a(f"""v_and_b32 v5, 15, v0               ; tok
    v_lshrrev_b32 v6, 4, v0            ; kg / g
    s_lshl_b32 s36, s21, 1
    s_lshr_b32 s37, s26, 1
    s_add_u32 s36, s36, s37            ; T
    s_mul_i32 s36, s36, 1280
    s_mul_i32 s37, s27, {16*81920}
    s_add_u32 s36, s36, s37
    s_add_u32 s36, s36, {OB}
    s_and_b32 s37, s26, 1
    s_lshl_b32 s37, s37, 4
    v_add_u32 v7, s37, v5
    v_lshrrev_b32 v2, 1, v6
    v_mul_u32_u24 v2, 81920, v2
    v_and_b32 v3, 1, v6
    v_lshl_add_u32 v2, v3, 9, v2
    v_lshl_add_u32 v8, v7, 4, v2
    v_mul_u32_u24 v2, {2*81920}, v6
    v_lshl_add_u32 v9, v7, 3, v2
    s_lshl_b32 s38, s20, 10
    s_mov_b32 m0, s38
    s_mov_b32 s39, 0""")
    OF = 24
    def odma(j):
        a(f"buffer_load_dwordx4 v{10 + j%5}, s[12:15], s39 offen lds")
        a(f"s_add_u32 m0, m0, 8192")
        if j % 5 == 4: a(f"s_add_u32 s39, s39, {256*1280}")
        else: a("s_nop 0")
    for j in range(13): odma(j)
    a("s_mov_b32 s40, s36")
    for s in range(8):
        a(f"buffer_load_dwordx4 v[{OF+4*s}:{OF+4*s+3}], v8, s[16:19], s40 offen")
        a(f"s_add_u32 s40, s40, {2*81920}")
    for s in range(2):
        for t in range(2):
            a(f"s_add_u32 s40, s36, {(8*s+t)*81920}")
            a(f"buffer_load_dwordx2 v[{OF+32+4*s+2*t}:{OF+33+4*s+2*t}], v9, s[16:19], s40 offen offset:1024")
    XR = 64; WR = 74
    a(f"""s_lshl_b32 s41, s21, 6
    s_lshl_b32 s42, s26, 4
    s_add_u32 s41, s41, s42
    v_add_u32 v15, s41, v5             ; token
    v_mul_u32_u24 v16, 1280, v15
    v_mul_u32_u24 v17, 40, v6
    v_add_u32 v17, s31, v17
    v_add_u32 v16, v16, v17""")
    for j in range(5):
        a(f"buffer_load_dwordx2 v[{XR+2*j}:{XR+2*j+1}], v16, s[8:11], 0 offen offset:{8*j}")
    for j in range(5):
        a(f"buffer_load_dwordx2 v[{WR+2*j}:{WR+2*j+1}], v17, s[32:35], 0 offen offset:{8*j}")
    a(f"""v_bfe_u32 v2, v0, 2, 2             ; r
    v_and_b32 v3, 3, v0                ; c
    v_mul_u32_u24 v3, 40, v3
    v_lshrrev_b32 v4, 1, v6
    v_mul_u32_u24 v4, 20, v4
    v_and_b32 v18, 1, v6
    v_lshl_add_u32 v4, v18, 2, v4
    v_add_u32 v4, v4, v2
    s_mul_i32 s42, s27, 320
    v_add_u32 v4, s42, v4
    v_mul_u32_u24 v4, 160, v4
    v_add_u32 v18, v4, v3
    v_mul_u32_u24 v4, 40, v6
    v_add3_u32 v4, v4, v2, s42
    v_add_u32 v4, 16, v4
    v_mul_u32_u24 v4, 160, v4
    v_add_u32 v19, v4, v3""")
    ACC = 84
    for i in range(20): a(f"v_mov_b32 v{ACC+i}, 0")
    WF = [104, 124]
    def rdW(buf, s):
        out = []
        for j in range(5):
            for t in range(2):
                if s < 8: out.append(f"ds_read_b64_tr_b16 v[{WF[buf]+4*j+2*t}:{WF[buf]+4*j+2*t+1}], v18 offset:{6400*s+1280*t+8*j}")
                else: out.append(f"ds_read_b64_tr_b16 v[{WF[buf]+4*j+2*t}:{WF[buf]+4*j+2*t+1}], v19 offset:{25600*(s-8)+3200*t+8*j}")
        return out
    a("s_waitcnt vmcnt(22)\ns_barrier")
    stamp_mid(a)
    if STAMP: a("s_waitcnt lgkmcnt(0)")
    for r in rdW(0, 0): a(r)
    for s in range(10):
        nO = 12 - (s + 1 if s < 8 else 8 + 2*(s - 7))
        if s < 9:
            for r in rdW((s + 1) & 1, s + 1): a(r)
            a(f"s_waitcnt vmcnt({10 + nO}) lgkmcnt(10)")
        else:
            a(f"s_waitcnt vmcnt({10 + nO}) lgkmcnt(0)")
        for j in range(5):
            a(f"v_mfma_f32_16x16x32_bf16 v[{ACC+4*j}:{ACC+4*j+3}], v[{WF[s&1]+4*j}:{WF[s&1]+4*j+3}], v[{OF+4*s}:{OF+4*s+3}], v[{ACC+4*j}:{ACC+4*j+3}]")
    a(f"""s_mul_i32 s42, s26, 5120
    s_add_u32 s42, s42, {RED}
    v_lshl_add_u32 v2, v0, 4, s42
    s_cmp_eq_u32 s27, 0
    s_cbranch_scc1 K3_fin""")
    for j in range(5): a(f"ds_write_b128 v2, v[{ACC+4*j}:{ACC+4*j+3}] offset:{1024*j}")
    a("s_waitcnt lgkmcnt(0)\ns_barrier")
    stamp_end(a, 2, 16, 2, 3)
    a("s_endpgm\nK3_fin:\ns_barrier")
    for j in range(5): a(f"ds_read_b128 v[{24+4*j}:{27+4*j}], v2 offset:{1024*j}")
    a("s_mov_b32 s33, 0xffff0000\nv_mov_b32 v20, 0\nv_mov_b32 v21, 0\nv_mov_b32 v22, 0\ns_waitcnt vmcnt(0) lgkmcnt(0)")
    for j in range(5):
        for i in range(2):
            r = ACC + 4*j + 2*i; xr = XR + 2*j + i; wr = WR + 2*j + i
            a(f"""v_pk_add_f32 v[{r}:{r+1}], v[{r}:{r+1}], v[{24+4*j+2*i}:{25+4*j+2*i}]
            v_lshlrev_b32 v44, 16, v{xr}
            v_and_b32 v45, s33, v{xr}
            v_pk_add_f32 v[{r}:{r+1}], v[{r}:{r+1}], v[44:45]
            v_cvt_pk_bf16_f32 v{xr}, v{r}, v{r+1}
            v_lshlrev_b32 v46, 16, v{wr}
            v_and_b32 v47, s33, v{wr}
            v_lshlrev_b32 v44, 16, v{xr}
            v_and_b32 v45, s33, v{xr}
            v_add_f32 v20, v20, v44
            v_fmac_f32 v21, v44, v44
            v_fmac_f32 v22, v44, v46
            v_add_f32 v20, v20, v45
            v_fmac_f32 v21, v45, v45
            v_fmac_f32 v22, v45, v47""")
        a(f"s_mov_b32 s43, {HB}\nbuffer_store_dwordx2 v[{XR+2*j}:{XR+2*j+1}], v16, s[16:19], s43 offen offset:{8*j}")
    a(f"""v_mov_b32 v23, 0
    v_permlane32_swap_b32 v20, v22
    v_permlane32_swap_b32 v21, v23
    v_add_f32 v20, v20, v22
    v_add_f32 v21, v21, v23
    v_permlane16_swap_b32 v20, v21
    v_add_f32 v20, v20, v21            ; g0: s1, g1: s2, g2: s3, g3: 0
    v_lshlrev_b32 v2, 4, v15
    v_lshl_add_u32 v2, v6, 2, v2
    s_mov_b32 s43, {ST}
    buffer_atomic_add_f32 v20, v2, s[16:19], s43 offen""")
    stamp_end(a, 2, 16, 2, 3)
    a("K3_exit:\ns_endpgm")
    return dict(name="k3_kernel", lines=a.lines, vgpr=144, grid=256, block=512, lds=RED + 4*5120)

def k4():
    a = Asm()
    UPO = 10240 + 64; RED = 20800
    stamp_begin(a)
    a(f"""s_cmp_ge_u32 s2, 256
    s_cbranch_scc1 K4_exit
    s_load_dwordx2 s[28:29], s[0:1], 32
    s_load_dwordx4 s[4:7], s[0:1], 40
    s_load_dwordx2 s[26:27], s[0:1], 64
    s_load_dwordx2 s[24:25], s[0:1], 80
    v_lshrrev_b32 v1, 6, v0
    v_lshlrev_b32 v2, 4, v0            ; tid*16
    v_readfirstlane_b32 s20, v1
    v_and_b32 v1, 63, v0               ; lane
    s_waitcnt lgkmcnt(0)""")
    srd(a, 8, 4, 1966080); srd(a, 12, 6, 1966080); srd(a, 16, 24, WS_SIZE); srd(a, 32, 28, 1280); srd(a, 36, 26, 2621440)
    STR = 24
    a(f"s_mov_b32 s40, {ST}")
    for i in range(8):
        a(f"buffer_load_dwordx4 v[{STR+4*i}:{STR+4*i+3}], v2, s[16:19], s40 offen\ns_add_u32 s40, s40, 4096")
    a("v_lshlrev_b32 v3, 2, v1")
    for i in range(5): a(f"buffer_load_dword v{56+i}, v3, s[32:35], 0 offen offset:{256*i}")
    HR = 64; SR = 76
    a(f"s_mul_i32 s41, s2, 10240\ns_add_u32 s42, s41, {HB}\ns_lshl_b32 s43, s2, 7\ns_add_u32 s43, s43, {ST}")
    for i in range(3):
        a(f"""v_add_u32 v4, {256*i}, v0
        v_min_u32 v4, 639, v4
        v_lshlrev_b32 v{10+i}, 4, v4
        v_mul_u32_u24 v5, 820, v4
        v_lshrrev_b32 v{13+i}, 16, v5
        v_lshlrev_b32 v5, 4, v{13+i}
        buffer_load_dwordx4 v[{HR+4*i}:{HR+4*i+3}], v{10+i}, s[16:19], s42 offen
        buffer_load_dwordx2 v[{SR+2*i}:{SR+2*i+1}], v5, s[16:19], s43 offen""")
    a(f"""s_lshr_b32 s21, s2, 3
    s_and_b32 s22, s2, 7
    s_mul_i32 s22, s22, 24
    s_add_u32 s22, s22, s21            ; fs
    s_cmp_ge_u32 s21, 24
    s_cbranch_scc1 K4_nodma
    v_mul_u32_u24 v4, 3072, v1
    s_lshl_b32 s44, s22, 4
    s_and_b32 s45, s20, 1
    s_mul_i32 s46, s45, {5*64*3072}
    s_add_u32 s44, s44, s46
    s_mul_i32 s45, s45, 5120
    s_cmp_ge_u32 s20, 2
    s_cbranch_scc1 K4_dmaup
    s_mov_b32 m0, s45""")
    for i in range(5):
        a(f"s_nop 0\nbuffer_load_dwordx4 v4, s[8:11], s44 offen lds\ns_add_u32 m0, m0, 1024\ns_add_u32 s44, s44, {64*3072}")
    a(f"s_branch K4_nodma\nK4_dmaup:\ns_add_u32 m0, s45, {UPO}")
    for i in range(5):
        a(f"s_nop 0\nbuffer_load_dwordx4 v4, s[12:15], s44 offen lds\ns_add_u32 m0, m0, 1024\ns_add_u32 s44, s44, {64*3072}")
    a("K4_nodma:\ns_mov_b32 s33, 0xffff0000\ns_waitcnt vmcnt(0)")
    stamp_mid(a)
    a("v_mov_b32 v6, 0")
    for i in range(5):
        a(f"v_lshlrev_b32 v4, 16, v{56+i}\nv_and_b32 v5, s33, v{56+i}\nv_add_f32 v6, v6, v4\nv_add_f32 v6, v6, v5")
    def wave_sum(v, t):
        a(f"""v_add_f32_dpp v{v}, v{v}, v{v} quad_perm:[1,0,3,2] row_mask:0xf bank_mask:0xf
        v_add_f32_dpp v{v}, v{v}, v{v} quad_perm:[2,3,0,1] row_mask:0xf bank_mask:0xf
        v_add_f32_dpp v{v}, v{v}, v{v} row_half_mirror row_mask:0xf bank_mask:0xf
        v_add_f32_dpp v{v}, v{v}, v{v} row_mirror row_mask:0xf bank_mask:0xf
        v_mov_b32 v{t}, v{v}
        v_permlane16_swap_b32 v{t}, v{v}
        v_add_f32 v{v}, v{v}, v{t}
        v_mov_b32 v{t}, v{v}
        v_permlane32_swap_b32 v{t}, v{v}
        v_add_f32 v{v}, v{v}, v{t}""")
    wave_sum(6, 4)
    a(f"v_mov_b32 v7, 0\nv_mov_b32 v8, 0\ns_mov_b32 s44, {hx(1.0/640)}\ns_mov_b32 s45, 0xfffff800\nv_sub_u32 v9, 2047, v0")
    for i in range(8):
        b = STR + 4*i
        a(f"""v_mul_f32 v{b}, s44, v{b}
        v_mul_f32 v{b+1}, s44, v{b+1}
        v_fma_f32 v{b+1}, -v{b}, v{b}, v{b+1}
        v_max_f32 v{b+1}, 0, v{b+1}
        v_add_f32 v{b+1}, {hx(1e-5)}, v{b+1}
        v_rsq_f32 v{b+1}, v{b+1}
        v_fma_f32 v{b+2}, -v{b}, v6, v{b+2}
        v_mul_f32 v{b+2}, v{b+2}, v{b+1}       ; r
        v_ashrrev_i32 v4, 31, v{b+2}
        v_or_b32 v4, 0x80000000, v4
        v_xor_b32 v4, v4, v{b+2}               ; sortable
        v_subrev_u32 v5, {256*i}, v9
        v_and_or_b32 v4, v4, s45, v5
        v_med3_u32 v8, v7, v8, v4
        v_max_u32 v7, v7, v4""")
    def merge_dpp(mod):
        a(f"""v_mov_b32_dpp v4, v7 {mod} row_mask:0xf bank_mask:0xf
        v_max_u32_dpp v8, v8, v8 {mod} row_mask:0xf bank_mask:0xf
        v_med3_u32 v8, v7, v4, v8
        v_max_u32 v7, v7, v4""")
    for mod in ("quad_perm:[1,0,3,2]", "quad_perm:[2,3,0,1]", "row_half_mirror", "row_mirror"): merge_dpp(mod)
    for sw in ("v_permlane16_swap_b32", "v_permlane32_swap_b32"):
        a(f"""v_mov_b32 v4, v7
        v_mov_b32 v5, v8
        {sw} v4, v7
        {sw} v5, v8
        v_max_u32 v8, v8, v5
        v_med3_u32 v8, v7, v4, v8
        v_max_u32 v7, v7, v4""")
    a(f"""s_lshl_b32 s44, s20, 3
    s_add_u32 s44, s44, {RED}
    v_mov_b32 v4, s44
    v_mov_b32 v16, v7
    v_mov_b32 v17, v8
    ds_write_b64 v4, v[16:17]
    v_mov_b32 v4, {RED}
    s_waitcnt lgkmcnt(0)
    s_barrier
    ds_read_b128 v[16:19], v4
    ds_read_b128 v[20:23], v4 offset:16
    s_waitcnt lgkmcnt(0)
    v_max_u32 v8, v17, v19
    v_med3_u32 v8, v16, v18, v8
    v_max_u32 v7, v16, v18
    v_max_u32 v8, v8, v21
    v_med3_u32 v8, v7, v20, v8
    v_max_u32 v7, v7, v20
    v_max_u32 v8, v8, v23
    v_med3_u32 v8, v7, v22, v8
    v_max_u32 v7, v7, v22
    v_and_b32 v7, 0x7ff, v7
    v_and_b32 v8, 0x7ff, v8
    v_sub_u32 v7, 2047, v7             ; idx0
    v_sub_u32 v8, 2047, v8             ; idx1""")
    BF = 96; AF = 176
    a(f"""s_cmp_ge_u32 s21, 24
    s_cselect_b32 s47, 1, s20
    s_cmp_lg_u32 s47, 0
    s_cbranch_scc1 K4_out
    v_and_b32 v4, 1, v1
    v_cmp_eq_u32 vcc, 0, v4
    v_cndmask_b32 v20, v8, v7, vcc
    v_mul_u32_u24 v21, 1280, v20
    v_lshrrev_b32 v22, 4, v1           ; kg
    v_lshl_add_u32 v21, v22, 4, v21
    v_lshlrev_b32 v23, 4, v20""")
    for i in range(80): a(f"v_mov_b32 v{BF+i}, 0x3f803f80")
    a(f"s_mov_b32 s48, 0x00030003\ns_mov_b32 s49, 0x00030003\ns_mov_b64 exec, s[48:49]\ns_mov_b32 s44, {HB}\ns_mov_b32 s45, {ST}")
    for s in range(20): a(f"buffer_load_dwordx4 v[{BF+4*s}:{BF+4*s+3}], v21, s[16:19], s44 offen offset:{64*s}")
    a(f"""buffer_load_dwordx4 v[88:91], v23, s[16:19], s45 offen
    s_mov_b64 exec, -1
    v_bfe_u32 v4, v1, 2, 2             ; r
    v_lshl_add_u32 v4, v22, 3, v4      ; 8kg + r
    v_lshlrev_b32 v4, 4, v4
    v_and_b32 v5, 1, v1
    v_lshl_add_u32 v4, v5, 3, v4
    v_bfe_u32 v5, v1, 1, 1
    v_mul_u32_u24 v5, {UPO}, v5
    v_add_u32 v4, v4, v5""")
    for s in range(20):
        for t in range(2):
            a(f"ds_read_b64_tr_b16 v[{AF+4*s+2*t}:{AF+4*s+2*t+1}], v4 offset:{512*s+64*t}")
        if s % 4 == 3: a("s_waitcnt lgkmcnt(0)")
    for i in range(4): a(f"v_mov_b32 v{84+i}, 0")
    a("s_waitcnt vmcnt(0) lgkmcnt(0)")
    for s in range(20):
        a(f"v_mfma_f32_16x16x32_bf16 v[84:87], v[{AF+4*s}:{AF+4*s+3}], v[{BF+4*s}:{BF+4*s+3}], v[84:87]")
    a(f"""s_mov_b32 s44, {hx(1.0/640)}
    v_mul_f32 v88, s44, v88            ; mean
    v_mul_f32 v89, s44, v89
    v_fma_f32 v89, -v88, v88, v89
    v_max_f32 v89, 0, v89
    v_add_f32 v89, {hx(1e-5)}, v89
    v_rsq_f32 v89, v89                 ; rstd
    v_fma_f32 v90, -v88, v6, v90
    v_mul_f32 v90, v90, v89            ; r""")
    for i in range(4):
        a(f"""v_mov_b32_dpp v92, v{84+i} quad_perm:[2,2,2,2] row_mask:0xf bank_mask:0xf
        v_fma_f32 v{84+i}, -v88, v92, v{84+i}
        v_mul_f32 v{84+i}, v{84+i}, v89""")
    L2E = 1.4426950408889634
    for i in range(4):
        a(f"""v_mov_b32 v{92+i}, v{84+i}""")
    for i in range(4):
        a(f"v_permlane32_swap_b32 v{92+i}, v{84+i}")
    for i in range(4):
        a(f"""v_mul_f32 v4, {hx(-L2E)}, v{92+i}
        v_exp_f32 v4, v4
        v_add_f32 v4, 1.0, v4
        v_rcp_f32 v4, v4
        v_mul_f32 v4, v4, v{92+i}
        v_mul_f32 v{84+i}, v4, v{84+i}""")
    a(f"""v_cvt_pk_bf16_f32 v84, v84, v85
    v_cvt_pk_bf16_f32 v85, v86, v87
    v_and_b32 v4, 1, v1
    v_mul_u32_u24 v4, 3072, v4
    v_lshl_add_u32 v4, v22, 3, v4
    s_lshl_b32 s44, s22, 4
    s_add_u32 s44, s44, {ACT}
    s_mov_b64 exec, 0x00030003
    buffer_store_dwordx2 v[84:85], v4, s[16:19], s44 offen
    s_cmp_lg_u32 s2, 0
    s_cbranch_scc1 K4_nosel
    s_mov_b64 exec, 3
    v_mul_f32 v90, {hx(-L2E)}, v90
    v_exp_f32 v90, v90
    v_add_f32 v90, 1.0, v90
    v_rcp_f32 v90, v90
    v_mov_b32 v91, v20
    v_lshlrev_b32 v4, 4, v1
    s_mov_b32 s44, {SEL}
    buffer_store_dwordx4 v[88:91], v4, s[16:19], s44 offen
K4_nosel:
    s_mov_b64 exec, -1
K4_out:
    s_mov_b32 s44, {hx(1.0/640)}
    s_lshl_b32 s45, s2, 3""")
    for i in range(3):
        m = SR + 2*i
        a(f"""v_mul_f32 v{m}, s44, v{m}
        v_mul_f32 v{m+1}, s44, v{m+1}
        v_fma_f32 v{m+1}, -v{m}, v{m}, v{m+1}
        v_max_f32 v{m+1}, 0, v{m+1}
        v_add_f32 v{m+1}, {hx(1e-5)}, v{m+1}
        v_rsq_f32 v{m+1}, v{m+1}
        v_add_u32 v{13+i}, s45, v{13+i}
        v_mul_f32 v{m}, -v{m}, v{m+1}
        v_add_f32 v{m+1}, 1.0, v{m+1}""")
        for k in range(4):
            a(f"""v_lshlrev_b32 v4, 16, v{HR+4*i+k}
            v_and_b32 v5, s33, v{HR+4*i+k}
            v_fma_f32 v4, v4, v{m+1}, v{m}
            v_fma_f32 v5, v5, v{m+1}, v{m}
            v_cvt_pk_bf16_f32 v{HR+4*i+k}, v4, v5""")
        a(f"buffer_store_dwordx4 v[{HR+4*i}:{HR+4*i+3}], v{10+i}, s[36:39], s41 offen")
    stamp_end(a, 3, 16, 2, 3)
    a("K4_exit:\ns_endpgm")
    return dict(name="k4_kernel", lines=a.lines, vgpr=256, grid=256, block=256, lds=RED + 64)

def k5():
    a = Asm()
    RED = 49152
    stamp_begin(a)
    a(f"""s_cmp_ge_u32 s2, 40
    s_cbranch_scc1 K5_exit
    s_load_dwordx4 s[4:7], s[0:1], 56
    s_load_dwordx2 s[24:25], s[0:1], 80
    v_lshrrev_b32 v1, 6, v0
    s_and_b32 s22, s2, 7
    v_readfirstlane_b32 s20, v1
    v_and_b32 v0, 63, v0
    s_mul_i32 s22, s22, 5
    s_lshr_b32 s21, s2, 3
    s_add_u32 s22, s22, s21
    v_lshrrev_b32 v2, 1, v0
    v_mul_u32_u24 v2, 1280, v2
    v_and_b32 v3, 1, v0
    v_lshl_add_u32 v2, v3, 4, v2
    s_mul_i32 s26, s20, {384*1280}
    s_lshl_b32 s27, s22, 5
    s_add_u32 s26, s26, s27
    s_mul_i32 s28, s20, 12288
    s_mov_b32 m0, s28
    s_waitcnt lgkmcnt(0)""")
    srd(a, 8, 4, 1966080); srd(a, 12, 6, 2621440); srd(a, 16, 24, WS_SIZE)
    BF = 24; AF = 72
    a(f"""v_lshrrev_b32 v6, 4, v0
    v_mul_u32_u24 v4, 3072, v3
    v_lshl_add_u32 v4, v6, 4, v4
    s_mul_i32 s29, s20, 768
    s_add_u32 s29, s29, {ACT}
    v_lshlrev_b32 v5, 4, v3
    s_mov_b32 s30, {SEL}
    buffer_load_dwordx4 v[16:19], v5, s[16:19], s30 offen""")
    for s in range(12): a(f"buffer_load_dwordx4 v[{BF+4*s}:{BF+4*s+3}], v4, s[16:19], s29 offen offset:{64*s}")
    for s in range(12):
        a(f"buffer_load_dwordx4 v2, s[8:11], s26 offen lds\ns_add_u32 m0, m0, 1024\ns_add_u32 s26, s26, {32*1280}")
    a(f"""v_bfe_u32 v7, v0, 2, 2
    v_lshl_add_u32 v7, v6, 3, v7
    v_lshlrev_b32 v7, 5, v7
    v_and_b32 v8, 3, v0
    v_lshl_add_u32 v7, v8, 3, v7
    v_add_u32 v7, s28, v7
    s_waitcnt vmcnt(24)
    v_mul_u32_u24 v9, 1280, v19
    v_lshl_add_u32 v9, v6, 3, v9
    v_add_u32 v9, s27, v9
    s_mov_b32 s30, {HB}
    buffer_load_dwordx2 v[20:21], v9, s[16:19], s30 offen""")
    for i in range(4): a(f"v_mov_b32 v{12+i}, 0")
    a("s_waitcnt vmcnt(0)")
    stamp_mid(a)
    for s in range(12):
        for t in range(2):
            a(f"ds_read_b64_tr_b16 v[{AF+4*s+2*t}:{AF+4*s+2*t+1}], v7 offset:{1024*s+128*t}")
        if s % 4 == 3: a("s_waitcnt lgkmcnt(0)")
    for s in range(12):
        a(f"v_mfma_f32_16x16x32_bf16 v[12:15], v[{AF+4*s}:{AF+4*s+3}], v[{BF+4*s}:{BF+4*s+3}], v[12:15]")
    a(f"""s_lshl_b32 s29, s20, 10
    s_add_u32 s29, s29, {RED}
    v_lshl_add_u32 v10, v0, 4, s29
    ds_write_b128 v10, v[12:15]
    s_waitcnt lgkmcnt(0)
    s_barrier
    s_cmp_lg_u32 s20, 0
    s_cbranch_scc1 K5_done
    ds_read_b128 v[24:27], v10 offset:1024
    ds_read_b128 v[28:31], v10 offset:2048
    ds_read_b128 v[32:35], v10 offset:3072
    s_mov_b32 s33, 0xffff0000
    v_mul_f32 v16, -v16, v17
    v_add_f32 v17, 1.0, v17
    v_lshlrev_b32 v36, 16, v20
    v_and_b32 v37, s33, v20
    v_lshlrev_b32 v38, 16, v21
    v_and_b32 v39, s33, v21
    s_waitcnt lgkmcnt(0)""")
    for i in range(4):
        a(f"""v_add_f32 v{12+i}, v{12+i}, v{24+i}
        v_add_f32 v{28+i}, v{28+i}, v{32+i}
        v_add_f32 v{12+i}, v{12+i}, v{28+i}
        v_fma_f32 v{36+i}, v{36+i}, v17, v16
        v_fma_f32 v{36+i}, v{12+i}, v18, v{36+i}""")
    a(f"""v_cvt_pk_bf16_f32 v36, v36, v37
    v_cvt_pk_bf16_f32 v37, v38, v39
    s_mov_b32 s30, 0x00030003
    s_mov_b32 s31, 0x00030003
    s_mov_b64 exec, s[30:31]
    buffer_store_dwordx2 v[36:37], v9, s[12:15], 0 offen
K5_done:""")
    stamp_end(a, 4, 16, 2, 3)
    a("K5_exit:\ns_endpgm")
    return dict(name="k5_kernel", lines=a.lines, vgpr=128, grid=40, block=256, lds=RED + 4096)

def emit(kernels, path, verbose=True):
    hdr = open(f"cdna_kernels/{NAME}.s.ref").read().split("; Override launch")[0]
    out = hdr
    for k in kernels:
        out += f"; @launch kernel={k['name']} grid=({k['grid']},1,1) block=({k['block']},1,1) lds={k['lds']}\n"
    out += '.amdgcn_target "amdgcn-amd-amdhsa--gfx950"\n.text\n'
    seen = []
    for k in kernels:
        if k['name'] in seen: continue
        seen.append(k['name'])
        lines = fix_hazards(k['lines'], verbose, k['name'])
        out += f".globl {k['name']}\n.p2align 8\n.type {k['name']},@function\n{k['name']}:\n" + "\n".join(lines) + "\n"
    out += '.section .rodata,"a"\n'
    seen = []
    for k in kernels:
        if k['name'] in seen: continue
        seen.append(k['name'])
        out += f""".p2align 6
.amdhsa_kernel {k['name']}
  .amdhsa_next_free_vgpr {k['vgpr']}
  .amdhsa_next_free_sgpr 96
  .amdhsa_accum_offset {k['vgpr']}
  .amdhsa_group_segment_fixed_size 0
  .amdhsa_kernarg_size 88
  .amdhsa_user_sgpr_count 2
  .amdhsa_user_sgpr_kernarg_segment_ptr 1
  .amdhsa_system_sgpr_workgroup_id_x 1
.end_amdhsa_kernel
"""
    open(path, "w").write(out)

if __name__ == "__main__":
    path = [x for x in sys.argv[1:] if not x.startswith("--")][0]
    emit([k1(), k2(), k3(), k4(), k5()], path)
    if "--empty5" in sys.argv:
        e = dict(name="ke_kernel", lines=["    s_endpgm"], vgpr=8, grid=256, block=256, lds=0)
        emit([k1(), k2(), k3(), k4(), k5(), e, e, e, e, e], path, False)
    if "--dup2" in sys.argv:
        emit([k1(), k2(), k2(), k3(), k4(), k5()], path, False)
    if "--dup1" in sys.argv:
        emit([k1(), k1(), k2(), k3(), k4(), k5()], path, False)
    if "--dup45" in sys.argv:
        emit([k1(), k2(), k3(), k4(), k5(), k4(), k5()], path, False)
    for o in sys.argv:
        if o.startswith("--probe="):
            kid, which = map(int, o.split("=")[1].split(","))
            a = Asm()
            a(f"""s_cmp_ge_u32 s2, 1
            s_cbranch_scc1 KD_exit
            s_load_dwordx2 s[24:25], s[0:1], 80
            v_and_b32 v1, 31, v0
            v_lshlrev_b32 v1, 7, v1
            s_waitcnt lgkmcnt(0)""")
            srd(a, 16, 24, WS_SIZE)
            a(f"""s_mov_b32 s4, {TS}
            s_mov_b32 s5, {TS + max(kid,0)*65536 + 4*which}
            buffer_load_dword v2, v1, s[16:19], s4 offen
            buffer_load_dword v3, v1, s[16:19], s5 offen
            s_waitcnt vmcnt(0)
            v_readlane_b32 s6, v2, 0
            v_readlane_b32 s7, v3, 0""")
            for l in range(1, 32):
                a(f"v_readlane_b32 s8, v2, {l}\nv_readlane_b32 s9, v3, {l}\ns_min_u32 s6, s6, s8\n" + (f"s_max_u32 s7, s7, s9" if which else "s_min_u32 s7, s7, s9"))
            a(f"""s_sub_u32 s7, s7, s6
            s_min_u32 s7, s7, 20000
            s_mul_i32 s7, s7, {4 if kid >= 0 else 0}
            s_add_u32 s7, s7, 20000
KD_spin:
            s_memrealtime s[10:11]
            s_waitcnt lgkmcnt(0)
            s_sub_u32 s10, s10, s6
            s_cmp_lt_u32 s10, s7
            s_cbranch_scc1 KD_spin
KD_exit:
            s_endpgm""")
            d = dict(name="kd_kernel", lines=a.lines, vgpr=8, grid=1, block=64, lds=0)
            emit([k1(), k2(), k3(), k4(), k5(), d], path, False)
```

```python
import sys
sys.path.insert(0, "gen")
import gen1
from gen1 import Asm, srd, hx, emit, X, STAMP, QB, KB, VB, TS, WS_SIZE

BLK = 0x780000; BS = 14336
B_PST = 10240; B_HC = 11264; B_KEY = 13312; B_ACT = 13440
NST = 12
def st0(a):
    if STAMP: a("s_memrealtime s[64:65]")
def st(a, i):
    if STAMP: a(f"s_memrealtime s[{64+2*i}:{65+2*i}]\ns_waitcnt lgkmcnt(0)")
def st_init(a):
    if STAMP:
        for i in range(1, NST): a(f"s_mov_b32 s{64+2*i}, -1")
def st_flush(a, kid):
    if STAMP:
        a(f"""s_memrealtime s[{64+2*(NST-1)}:{65+2*(NST-1)}]
        s_waitcnt lgkmcnt(0)
        s_lshl_b32 s94, s2, 3
        s_add_u32 s94, s94, s20
        s_lshl_b32 s94, s94, 6
        s_add_u32 s94, s94, {TS + kid*131072}
        s_mov_b64 exec, 1""")
        for i in range(NST // 4):
            for k in range(4): a(f"v_mov_b32 v{4+k}, s{64+2*(4*i+k)}")
            a(f"buffer_store_dwordx4 v[4:7], off, s[16:19], s94 offset:{16*i}\ns_nop 1")
        a("s_waitcnt vmcnt(0)")

SPIN = 1 << 16

def kf():
    a = Asm()
    L_FF = 107584; UPO = 10304; L_CMB = L_FF + 20608; L_RX = L_CMB + 24576; L_IDX = L_RX + 8192; LDS = L_IDX + 64
    assert LDS <= 163840
    S = [16, 48]; O = [80, 96]
    QM = [112, 116]; QT = 120
    KT = [122, 124]
    KM = [128 + 4*i for i in range(4)]
    V = [144 + 8*i for i in range(4)]
    XR = 176; WR = 186
    AKM, AKT, AV, IDX, AWO = 2, 3, 4, 5, 6
    st0(a)
    a(f"""s_cmp_ge_u32 s2, 256
    s_cbranch_scc1 KF_exit
    s_load_dwordx2 s[24:25], s[0:1], 80
    s_load_dwordx2 s[4:5], s[0:1], 16
    v_lshrrev_b32 v1, 6, v0
    v_and_b32 v0, 63, v0
    s_and_b32 s21, s2, 7
    v_readfirstlane_b32 s20, v1
    s_lshl_b32 s21, s21, 2
    s_bfe_u32 s22, s2, 0x20003
    s_add_u32 s21, s21, s22
    s_lshr_b32 s22, s2, 5
    s_lshr_b32 s23, s21, 1             ; hp
    s_and_b32 s26, s21, 1              ; odd
    s_mul_i32 s27, s23, 163840
    s_lshr_b32 s30, s20, 2             ; kh
    s_and_b32 s31, s20, 3
    s_mul_i32 s34, s30, {32*2560}
    s_add_u32 s28, s27, {KB}
    s_add_u32 s34, s34, s28
    s_mov_b32 s35, s34
    s_mul_i32 s29, s21, 81920
    s_add_u32 s29, s29, {VB}
    s_mul_i32 s36, s30, {32*1280}
    s_add_u32 s36, s36, s29            ; V soffset
    v_lshlrev_b32 v9, 4, v0            ; lane*16
    v_and_b32 v10, 31, v0
    v_lshlrev_b32 v11, 4, v10
    v_lshrrev_b32 v12, 5, v0
    s_mul_i32 s42, s26, 1536
    v_add_u32 v{AKM}, s42, v9
    v_mul_u32_u24 v13, 2560, v12
    s_lshl_b32 s43, s26, 3
    s_add_u32 s43, s43, 1024
    v_add3_u32 v{AKT}, v13, v11, s43
    v_mul_u32_u24 v13, 320, v12
    v_add_u32 v{AV}, v13, v11
    s_lshl_b32 s40, s22, 3
    s_lshl_b32 s41, s31, 1
    s_add_u32 s40, s40, s41
    s_mul_i32 s41, s40, 2560
    s_add_u32 s41, s41, s27
    s_mov_b32 s44, 0x000fffff
    s_mov_b32 s45, 0x000fffff
    v_cmp_eq_u32 vcc, 20, v10
    v_mov_b32 v14, 0x3f803f80
    s_mov_b32 s18, {WS_SIZE}
    v_cndmask_b32 v14, 0, v14, vcc
    s_mov_b32 s19, 0x20000""")
    st_init(a)
    for i in range(24): a(f"v_mov_b32 v{V[0]+i}, v14")
    a("""s_waitcnt lgkmcnt(0)
    s_mov_b32 s16, s24
    s_and_b32 s17, s25, 0xffff""")
    def ldK(b): return f"buffer_load_dwordx4 v[{KM[b]}:{KM[b]+3}], v{AKM}, s[16:19], s34 offen\ns_add_u32 s34, s34, 2560"
    def ldKT(b): return f"buffer_load_dwordx2 v[{KT[b]}:{KT[b]+1}], v{AKT}, s[16:19], s35 offen\ns_add_u32 s35, s35, 5120"
    def ldV(b): return f"s_mov_b64 exec, s[44:45]\nbuffer_load_dwordx4 v[{V[b]}:{V[b]+3}], v{AV}, s[16:19], s36 offen\nbuffer_load_dwordx4 v[{V[b]+4}:{V[b]+7}], v{AV}, s[16:19], s36 offen offset:640\ns_mov_b64 exec, -1\ns_add_u32 s36, s36, 1280"
    def dmaWO(): return f"buffer_load_dwordx4 v{AWO}, s[8:11], s37 offen lds\ns_add_u32 s37, s37, 61440\ns_add_u32 m0, m0, 7680"
    a(f"buffer_load_dwordx2 v[{QT}:{QT+1}], v{AKT}, s[16:19], s41 offen")
    a(ldKT(0))
    a(f"buffer_load_dwordx4 v[{QM[0]}:{QM[0]+3}], v{AKM}, s[16:19], s41 offen")
    a(ldK(0))
    a(f"buffer_load_dwordx4 v[{QM[1]}:{QM[1]+3}], v{AKM}, s[16:19], s41 offen offset:2560")
    a(ldV(0)); a(ldK(1))
    a(ldV(1)); a(ldKT(1)); a(ldK(2))
    a(ldV(2)); a(ldK(3))
    a(f"""s_load_dwordx2 s[6:7], s[0:1], 0
    s_load_dwordx8 s[48:55], s[0:1], 32
    s_load_dwordx2 s[56:57], s[0:1], 64""")
    srd(a, 8, 4, 819200)
    for i in range(8): a(f"v_mov_b32 v{V[3]+i}, v14")
    a(f"""v_mov_b32 v{IDX}, 0xdddddddd
    v_mul_u32_u24 v13, 26, v0
    v_lshrrev_b32 v13, 8, v13          ; l/10
    v_mul_u32_u24 v13, {1280-160}, v13
    s_mul_i32 s38, s22, 160            ; cg*160
    v_add3_u32 v{AWO}, v13, v9, s38
    s_mul_i32 s37, s20, 7680
    s_mul_i32 s42, s20, 960
    s_mov_b32 m0, s42""")
    for i in range(32): a(f"v_mov_b32 v{O[0]+i}, 0")
    for i in range(8): a(f"v_mov_b32 v{S[1]+24+i}, 0")
    def m2b(buf, t): return f"v_mfma_f32_32x32x4_2b_bf16 v[{S[buf]}:{S[buf]+31}], v[{KT[(t>>1)&1]}:{KT[(t>>1)&1]+1}], v[{QT}:{QT+1}], 0 cbsz:1 abid:{t&1}"
    def m16(buf, t, q): return f"v_mfma_f32_32x32x16_bf16 v[{S[buf]+16*q}:{S[buf]+16*q+15}], v[{KM[t&3]}:{KM[t&3]+3}], v[{QM[q]}:{QM[q]+3}], v[{S[buf]+16*q}:{S[buf]+16*q+15}]"
    def pv(buf, t, i): return f"v_smfmac_f32_32x32x32_bf16 v[{O[i>>1]}:{O[i>>1]+15}], v[{V[t&3]+4*(i&1)}:{V[t&3]+4*(i&1)+3}], v[{S[buf]+8*i}:{S[buf]+8*i+7}], v{IDX}"
    def ex(buf, lo, hi):
        for i in range(lo, hi): a(f"v_exp_f32 v{S[buf]+i}, v{S[buf]+i}")
    a(f"""v_and_b32 v7, 15, v0               ; tok
    v_lshrrev_b32 v8, 4, v0            ; g / kg
    s_lshl_b32 s42, s21, 6
    s_lshl_b32 s43, s31, 4
    s_add_u32 s42, s42, s43
    v_add_u32 v15, s42, v7
    v_mul_u32_u24 v13, 40, v8
    v_add_u32 v127, s38, v13
    v_mul_u32_u24 v13, 1280, v15
    v_add_u32 v1, v13, v127
    v_mul_u32_u24 v126, 3072, v0
    s_waitcnt lgkmcnt(0)""")
    srd(a, 12, 6, 2621440)
    a(f"""s_lshr_b32 s32, s2, 3             ; j
    s_and_b32 s33, s2, 7
    s_cmp_eq_u32 s30, 0
    s_cselect_b32 s60, s50, s52
    s_cselect_b32 s61, s51, s53
    s_and_b32 s61, s61, 0xffff
    s_cmp_lt_u32 s32, 24
    s_cselect_b32 s62, 1966080, 0
    s_mov_b32 s63, 0x20000
    s_and_b32 s49, s49, 0xffff
    s_mov_b32 s50, 1280
    s_mov_b32 s51, 0x20000             ; s[48:51] = w_r
    s_mov_b32 s52, s54
    s_and_b32 s53, s55, 0xffff
    s_mov_b32 s54, 1966080
    s_mov_b32 s55, 0x20000             ; s[52:55] = down
    s_and_b32 s57, s57, 0xffff
    s_mov_b32 s58, 2621440
    s_mov_b32 s59, 0x20000             ; s[56:59] = out
    s_waitcnt vmcnt(10)""")
    st(a, 1)
    a(m2b(0, 0)); a(m16(0, 0, 0)); a(m16(0, 0, 1))
    a(f"s_mov_b32 s46, 0\ns_nop 9")
    def trip(last):
        extra = 0
        for it in range(4):
            c = it & 1; n = 1 - c
            ex(c, 0, 2)
            a(pv(n, it - 1, 3))
            a(f"s_setprio {3-it}")
            if not last:
                a("s_waitcnt vmcnt(7)")
                a(ldV((it + 3) & 3))
            else:
                a(f"s_waitcnt vmcnt({[7, 6+3, 3+9, 9][it]})")
                if it == 0: a(ldV(3))
            ex(c, 2, 6)
            if not (last and it == 3): a(m2b(n, it + 1))
            ex(c, 6, 14)
            a(pv(c, it, 0))
            if not last:
                if it & 1 == 0: a(ldKT(((it + 1) >> 1) & 1))
            elif it == 0:
                a(f"""s_mul_i32 s42, s33, 24
                s_add_u32 s42, s42, s32
                s_lshl_b32 s42, s42, 4
                s_mul_i32 s43, s31, {64*3072}
                s_add_u32 s43, s43, s42
                s_mul_i32 s47, s30, {UPO}
                s_lshl_b32 s39, s31, 10
                s_add_u32 s39, s39, s47
                s_add_u32 m0, s39, {L_FF}
                s_and_b32 s39, s31, 1
                buffer_load_dwordx4 v126, s[60:63], s43 offen lds
                s_add_u32 m0, m0, 4096
                s_add_u32 s43, s43, {4*64*3072}
                buffer_load_dwordx4 v126, s[60:63], s43 offen lds
                s_add_u32 s39, s39, 8
                s_mul_i32 s43, s39, {64*3072}
                s_add_u32 s43, s43, s42
                s_lshl_b32 s39, s39, 10
                s_add_u32 s39, s39, s47
                s_add_u32 m0, s39, {L_FF}
                s_nop 0
                buffer_load_dwordx4 v126, s[60:63], s43 offen lds""")
            elif it == 1:
                a(f"""buffer_load_dwordx4 v[{XR}:{XR+3}], v1, s[12:15], 0 offen
                buffer_load_dwordx4 v[{XR+4}:{XR+7}], v1, s[12:15], 0 offen offset:16
                buffer_load_dwordx2 v[{XR+8}:{XR+9}], v1, s[12:15], 0 offen offset:32""")
            ex(c, 14, 18)
            a(pv(c, it, 1))
            if not last:
                a(ldK(it & 3))
            elif it == 1:
                a(f"""buffer_load_dwordx4 v[{WR}:{WR+3}], v127, s[48:51], 0 offen
                buffer_load_dwordx4 v[{WR+4}:{WR+7}], v127, s[48:51], 0 offen offset:16
                buffer_load_dwordx2 v[{WR+8}:{WR+9}], v127, s[48:51], 0 offen offset:32""")
            ex(c, 18, 22)
            if not (last and it == 3): a(m16(n, it + 1, 0))
            if not last and (it & 1): a(dmaWO())
            ex(c, 22, 26)
            if not (last and it == 3): a(m16(n, it + 1, 1))
            if it == 3 and not last: a("s_add_u32 s46, s46, 1\ns_cmp_lt_u32 s46, 7")
            ex(c, 26, 30)
            a(pv(c, it, 2))
            ex(c, 30, 32)
    a(".p2align 3\nKF_loop:")
    trip(False)
    a("s_cbranch_scc1 KF_loop")
    trip(True)
    a("s_setprio 0\ns_nop 0")
    a(pv(1, 3, 3))
    a(f"""s_mul_i32 s42, s20, 3072
    s_add_u32 s42, s42, {L_CMB}
    v_add_u32 v13, s42, v9
    s_xor_b32 s43, s20, 4
    s_mul_i32 s43, s43, 3072
    s_add_u32 s43, s43, {L_CMB}
    v_add_u32 v14, s43, v9
    s_add_u32 s40, s40, s30
    s_lshl_b32 s39, s21, 3
    s_add_u32 s39, s39, s22
    s_mul_i32 s39, s39, {BS}
    s_add_u32 s39, s39, {BLK}
    s_and_b32 s42, s40, 7
    s_mul_i32 s42, s42, 1280
    s_add_u32 s42, s42, s39
    s_cmp_eq_u32 s30, 0
    s_cbranch_scc1 KF_c0""")
    for i in range(3): a(f"ds_write_b128 v13, v[{O[0]+4*i}:{O[0]+4*i+3}] offset:{1024*i}")
    for i in range(12): a(f"v_mov_b32 v{O[0]+i}, v{O[1]+i}")
    a("s_branch KF_c1\nKF_c0:")
    for i in range(3): a(f"ds_write_b128 v13, v[{O[1]+4*i}:{O[1]+4*i+3}] offset:{1024*i}")
    a(f"""KF_c1:
    v_lshlrev_b32 v11, 3, v10
    s_mov_b32 s46, {hx(2.0**-90)}
    s_mov_b32 s47, {hx(2.0**90)}
    s_waitcnt vmcnt(0) lgkmcnt(0)
    s_barrier""")
    st(a, 2)
    for i in range(3): a(f"ds_read_b128 v[{16+4*i}:{19+4*i}], v14 offset:{1024*i}")
    a("s_waitcnt lgkmcnt(0)")
    Oo = O[0]
    for i in range(6): a(f"v_pk_add_f32 v[{Oo+2*i}:{Oo+2*i+1}], v[{Oo+2*i}:{Oo+2*i+1}], v[{16+2*i}:{17+2*i}]")
    a(f"""v_mov_b32 v12, v{Oo+8}
    v_mov_b32 v13, v{Oo+8}
    v_permlane32_swap_b32 v12, v13
    v_cmp_nle_f32 vcc, s46, v13
    v_cmp_nge_f32 s[46:47], s47, v13
    s_or_b64 vcc, vcc, s[46:47]
    s_cbranch_vccnz KF_fallback
KF_fin:
    v_rcp_f32 v12, v13""")
    for i in range(6):
        a(f"v_pk_mul_f32 v[{Oo+2*i}:{Oo+2*i+1}], v[{Oo+2*i}:{Oo+2*i+1}], v[12:13] op_sel_hi:[1,0]")
    for i in range(6):
        a(f"v_cvt_pk_bf16_f32 v{Oo+i}, v{Oo+2*i}, v{Oo+2*i+1}")
    for i in range(6):
        a(f"v_min_u32 v{Oo+i}, -2, v{Oo+i}")
    a(f"""buffer_store_dwordx4 v[{Oo}:{Oo+3}], v9, s[16:19], s42 offen sc1
    s_mov_b32 exec_hi, 0
    buffer_store_dwordx2 v[{Oo+4}:{Oo+5}], v11, s[16:19], s42 offen offset:1024 sc1
    s_mov_b64 exec, -1""")
    st(a, 3)
    WF = 16
    OF = 196
    ACC = 236
    HS = 8 * BS
    a(f"""v_bfe_u32 v2, v0, 2, 2             ; r
    v_and_b32 v3, 3, v0                ; c
    v_mul_u32_u24 v3, 40, v3
    v_lshrrev_b32 v4, 1, v8
    v_mul_u32_u24 v5, 20, v4
    v_and_b32 v6, 1, v8
    v_lshl_add_u32 v5, v6, 2, v5
    s_mul_i32 s43, s30, 320
    v_add3_u32 v5, v5, v2, s43
    v_mul_u32_u24 v5, 160, v5
    v_add_u32 v12, v5, v3
    v_mul_u32_u24 v5, 40, v8
    s_add_u32 s43, s43, 16
    v_add3_u32 v5, v5, v2, s43
    v_mul_u32_u24 v5, 160, v5
    v_add_u32 v13, v5, v3""")
    def rdW(slot, s):
        for j in range(5):
            for t in range(2):
                d = WF + 20*slot + 4*j + 2*t
                if s < 8: a(f"ds_read_b64_tr_b16 v[{d}:{d+1}], v12 offset:{6400*s+1280*t+8*j}")
                else: a(f"ds_read_b64_tr_b16 v[{d}:{d+1}], v13 offset:{25600*(s-8)+3200*t+8*j}")
    for s in (0, 1, 2, 4, 5, 6, 7, 3): rdW(s, s)
    a(f"""s_lshr_b32 s42, s21, 2
    s_mul_i32 s42, s42, {BS}
    s_lshl_b32 s43, s21, 1
    s_lshr_b32 s46, s31, 1
    s_add_u32 s43, s43, s46
    s_and_b32 s43, s43, 7
    s_mul_i32 s43, s43, 1280
    s_add_u32 s42, s42, s43
    s_mul_i32 s43, s30, {16*HS}
    s_add_u32 s42, s42, s43
    s_add_u32 s42, s42, {BLK}
    s_and_b32 s43, s31, 1
    s_lshl_b32 s43, s43, 4
    v_add_u32 v5, s43, v7
    v_mul_u32_u24 v4, {HS}, v4
    v_lshl_add_u32 v4, v6, 9, v4
    v_lshl_add_u32 v2, v5, 4, v4
    v_mul_u32_u24 v4, {2*HS}, v8
    v_lshl_add_u32 v3, v5, 3, v4""")
    for i in range(20): a(f"v_mov_b32 v{ACC+i}, 0")
    a(f"s_mov_b32 s46, 0\ns_mov_b32 s47, {SPIN}\ns_waitcnt lgkmcnt(0)")
    st(a, 4)
    for s in range(10):
        a(f"KF_RL{s}:")
        if s < 8:
            a(f"s_add_u32 s43, s42, {2*s*HS}\nbuffer_load_dwordx4 v[{OF+4*s}:{OF+4*s+3}], v2, s[16:19], s43 offen sc1")
        else:
            for t in range(2):
                a(f"s_add_u32 s43, s42, {(8*(s-8)+t)*HS}\nbuffer_load_dwordx2 v[{OF+4*s+2*t}:{OF+4*s+2*t+1}], v3, s[16:19], s43 offen offset:1024 sc1")
    for s in range(1, 10): a(f"s_cmp_eq_u32 s46, {s}\ns_cbranch_scc1 KF_CK{s}")
    for s in range(10):
        nO = 12 - (s + 1 if s < 8 else 8 + 2*(s - 7))
        o = OF + 4*s
        a(f"""KF_CK{s}:
        s_waitcnt vmcnt({nO})
        v_max3_u32 v4, v{o}, v{o+1}, v{o+2}
        v_max_u32 v4, v4, v{o+3}
        v_cmp_eq_u32 vcc, -1, v4
        s_cbranch_vccnz KF_RT{s}
KF_GO{s}:""")
        if s == 8: a("s_waitcnt lgkmcnt(0)")
        slot = s & 7
        for j in range(5):
            a(f"v_mfma_f32_16x16x32_bf16 v[{ACC+4*j}:{ACC+4*j+3}], v[{WF+20*slot+4*j}:{WF+20*slot+4*j+3}], v[{o}:{o+3}], v[{ACC+4*j}:{ACC+4*j+3}]")
        if s < 2: rdW(s, 8 + s)
    st(a, 5)
    a(f"""s_mul_i32 s42, s31, 3072
    s_add_u32 s42, s42, {L_CMB}
    v_add_u32 v4, s42, v9
    s_lshl_b32 s42, s31, 11
    s_add_u32 s42, s42, {L_RX}
    v_add_u32 v5, s42, v9
    s_cmp_eq_u32 s30, 0
    s_cbranch_scc1 KF_main""")
    for j in range(3): a(f"ds_write_b128 v4, v[{ACC+4*j}:{ACC+4*j+3}] offset:{1024*j}")
    for j in range(3, 5): a(f"ds_write_b128 v5, v[{ACC+4*j}:{ACC+4*j+3}] offset:{1024*(j-3)}")
    a("s_waitcnt lgkmcnt(0)\ns_barrier\ns_branch KF_helper")
    for s in range(10):
        a(f"""KF_RT{s}:
        s_mov_b32 s46, {s}
        s_sub_u32 s47, s47, 1
        s_cbranch_scc0 KF_RL{s}
        s_mov_b32 s47, 0
        s_branch KF_GO{s}""")
    a("KF_main:\ns_mov_b32 s46, 0xffff0000")
    WU = 40
    a("v_mov_b32 v23, 0")
    for i in range(10):
        a(f"""v_lshlrev_b32 v{WU+2*i}, 16, v{WR+i}
        v_and_b32 v{WU+2*i+1}, s46, v{WR+i}
        v_lshlrev_b32 v60, 16, v{XR+i}
        v_and_b32 v61, s46, v{XR+i}
        v_add_f32 v23, v23, v{WU+2*i}
        v_add_f32 v23, v23, v{WU+2*i+1}
        v_add_f32 v{ACC+2*i}, v{ACC+2*i}, v60
        v_add_f32 v{ACC+2*i+1}, v{ACC+2*i+1}, v61""")
    a("v_mov_b32 v20, 0\nv_mov_b32 v21, 0\nv_mov_b32 v22, 0\ns_barrier")
    for j in range(3): a(f"ds_read_b128 v[{64+4*j}:{67+4*j}], v4 offset:{1024*j}")
    for j in range(3, 5): a(f"ds_read_b128 v[{64+4*j}:{67+4*j}], v5 offset:{1024*(j-3)}")
    HP = XR
    for i in range(10):
        if i % 2 == 0: a(f"s_waitcnt lgkmcnt({4 - i//2})")
        r = ACC + 2*i
        a(f"""v_pk_add_f32 v[{r}:{r+1}], v[{r}:{r+1}], v[{64+2*i}:{65+2*i}]
        v_cvt_pk_bf16_f32 v{HP+i}, v{r}, v{r+1}
        v_min_u32 v{HP+i}, -2, v{HP+i}
        v_lshlrev_b32 v{r}, 16, v{HP+i}
        v_and_b32 v{r+1}, s46, v{HP+i}
        v_add_f32 v20, v20, v{r}
        v_fmac_f32 v21, v{r}, v{r}
        v_fmac_f32 v22, v{r}, v{WU+2*i}
        v_add_f32 v20, v20, v{r+1}
        v_fmac_f32 v21, v{r+1}, v{r+1}
        v_fmac_f32 v22, v{r+1}, v{WU+2*i+1}""")
    a(f"""v_lshlrev_b32 v2, 4, v7
    v_lshl_add_u32 v3, v8, 2, v2       ; tok*16 + g*4
    v_permlane32_swap_b32 v20, v22
    v_permlane32_swap_b32 v21, v23
    v_add_f32 v20, v20, v22
    v_add_f32 v21, v21, v23
    s_lshl_b32 s42, s31, 8
    s_add_u32 s43, s42, s39
    v_permlane16_swap_b32 v20, v21
    v_add_f32 v20, v20, v21
    v_min_u32 v20, -2, v20
    s_add_u32 s43, s43, {B_PST}
    buffer_store_dword v20, v3, s[16:19], s43 offen sc1""")
    st(a, 6)
    a(f"""s_mul_i32 s43, s21, {8*BS}
    s_add_u32 s43, s43, s42
    s_add_u32 s43, s43, {BLK + B_PST}
    s_add_u32 s41, s43, {BS}
    v_mul_u32_u24 v4, {2*BS}, v8
    v_add_u32 v4, v4, v2
    s_mov_b32 s47, {SPIN}
KF_p1:
    buffer_load_dwordx4 v[24:27], v4, s[16:19], s43 offen sc1
    buffer_load_dwordx4 v[28:31], v4, s[16:19], s41 offen sc1
    s_sub_u32 s47, s47, 1
    s_cbranch_scc1 KF_p1d
    s_waitcnt vmcnt(0)
    v_max3_u32 v5, v24, v25, v26
    v_max3_u32 v5, v5, v27, v28
    v_max3_u32 v5, v5, v29, v30
    v_max_u32 v5, v5, v31
    v_cmp_eq_u32 vcc, -1, v5
    s_cbranch_vccnz KF_p1
KF_p1d:
    s_waitcnt vmcnt(0)""")
    st(a, 7)
    a(f"""v_pk_add_f32 v[24:25], v[24:25], v[28:29]
    v_pk_add_f32 v[26:27], v[26:27], v[30:31]""")
    for sw in ("v_permlane16_swap_b32", "v_permlane32_swap_b32"):
        for i in range(4): a(f"v_mov_b32 v{28+i}, v{24+i}")
        for i in range(4): a(f"{sw} v{28+i}, v{24+i}")
        a("v_pk_add_f32 v[24:25], v[24:25], v[28:29]\nv_pk_add_f32 v[26:27], v[26:27], v[30:31]")
    L2E = 1.4426950408889634
    a(f"""s_mov_b32 s41, {hx(1.0/640)}
    v_mul_f32 v24, s41, v24            ; mean
    v_mul_f32 v25, s41, v25
    v_fma_f32 v25, -v24, v24, v25
    v_max_f32 v25, 0, v25
    v_add_f32 v25, {hx(1e-5)}, v25
    v_rsq_f32 v25, v25                 ; rstd
    v_fma_f32 v26, -v24, v27, v26
    s_mov_b32 s41, 0xfffff800
    v_mul_f32 v26, v26, v25            ; r
    v_sub_u32 v5, 2047, v15
    v_ashrrev_i32 v28, 31, v26
    v_or_b32 v28, 0x80000000, v28
    v_xor_b32 v28, v28, v26
    v_min_u32 v28, 0xfffff7ff, v28
    v_and_or_b32 v28, v28, s41, v5     ; key
    v_mov_b32 v30, v28
    v_mov_b32 v31, 0""")
    for mod in ("quad_perm:[1,0,3,2]", "quad_perm:[2,3,0,1]", "row_half_mirror", "row_mirror"):
        a(f"""v_mov_b32_dpp v5, v30 {mod} row_mask:0xf bank_mask:0xf
        v_max_u32_dpp v31, v31, v31 {mod} row_mask:0xf bank_mask:0xf
        v_med3_u32 v31, v30, v5, v31
        v_max_u32 v30, v30, v5""")
    a(f"""s_cmp_lg_u32 s22, s31
    s_cbranch_scc1 KF_nokey
    s_add_u32 s43, s39, {B_KEY}
    s_mov_b64 exec, 1
    buffer_store_dwordx2 v[30:31], off, s[16:19], s43 sc1
    s_mov_b64 exec, -1
KF_nokey:
    v_mul_f32 v26, {hx(-L2E)}, v26
    v_cmp_eq_u32 vcc, v28, v31
    v_exp_f32 v26, v26
    v_cmp_eq_u32 s[34:35], v28, v30
    v_cndmask_b32 v5, 0, 1, vcc
    v_add_f32 v26, 1.0, v26
    s_or_b64 s[34:35], s[34:35], vcc
    v_rcp_f32 v26, v26                 ; sigmoid(r)
    v_lshlrev_b32 v5, 8, v5
    v_lshl_add_u32 v6, v8, 3, v5
    v_lshl_add_u32 v4, v8, 4, v5
    v_min_u32 v32, -2, v24
    v_min_u32 v33, -2, v25
    v_min_u32 v34, -2, v26
    v_mov_b32 v35, 0
    s_lshl_b32 s43, s31, 9
    s_add_u32 s43, s43, s39
    s_add_u32 s43, s43, {B_HC}
    s_mov_b64 exec, s[34:35]
    buffer_store_dwordx4 v[{HP}:{HP+3}], v4, s[16:19], s43 offen sc1
    buffer_store_dwordx4 v[{HP+4}:{HP+7}], v4, s[16:19], s43 offen offset:64 sc1
    buffer_store_dwordx2 v[{HP+8}:{HP+9}], v6, s[16:19], s43 offen offset:128 sc1
    s_and_b32 exec_lo, exec_lo, 0xffff
    s_mov_b32 exec_hi, 0
    buffer_store_dwordx4 v[32:35], v5, s[16:19], s43 offen offset:160 sc1
    s_mov_b64 exec, -1""")
    st(a, 8)
    OP = 64
    a("v_mul_f32 v36, -v24, v25\nv_add_f32 v38, 1.0, v25")
    for i in range(10):
        r = ACC + 2*i
        a(f"v_pk_fma_f32 v[{r}:{r+1}], v[{r}:{r+1}], v[38:39], v[36:37] op_sel_hi:[1,0,0]")
    for i in range(10):
        a(f"v_cvt_pk_bf16_f32 v{OP+i}, v{ACC+2*i}, v{ACC+2*i+1}")
    def outst():
        a(f"""buffer_store_dwordx4 v[{OP}:{OP+3}], v1, s[56:59], 0 offen
        buffer_store_dwordx4 v[{OP+4}:{OP+7}], v1, s[56:59], 0 offen offset:16
        buffer_store_dwordx2 v[{OP+8}:{OP+9}], v1, s[56:59], 0 offen offset:32""")
    a("s_andn2_b64 exec, exec, s[34:35]")
    outst()
    a(f"""s_mov_b64 exec, -1
    v_mov_b32 v4, {L_IDX}
    s_barrier
    ds_read_b64 v[16:17], v4
    s_waitcnt lgkmcnt(0)
    v_cmp_ne_u32 vcc, v16, v15
    v_cmp_ne_u32 s[36:37], v17, v15
    s_and_b64 s[34:35], s[34:35], vcc
    s_and_b64 exec, s[34:35], s[36:37]
    s_cbranch_execz KF_noc""")
    outst()
    a("KF_noc:\ns_mov_b64 exec, -1\ns_branch KF_ffn2")
    AF = 16; BF = 96; CS = 176; AC = 180; MT = 184
    a(f"""KF_helper:
    s_cmp_eq_u32 s31, 0
    s_cbranch_scc1 KF_poller
    s_sub_u32 s42, s32, 24
    s_cmp_ge_u32 s42, 5
    s_cbranch_scc1 KF_done
    s_mul_i32 s43, s33, 5
    s_add_u32 s42, s42, s43
    s_lshl_b32 s42, s42, 5
    s_sub_u32 s43, s31, 1
    s_mul_i32 s46, s43, {512*1280}
    s_add_u32 s42, s42, s46
    s_lshl_b32 m0, s43, 14
    v_lshrrev_b32 v2, 1, v0
    v_mul_u32_u24 v2, 1280, v2
    v_and_b32 v3, 1, v0
    v_lshl_add_u32 v2, v3, 4, v2
    s_mov_b32 s46, 0
KF_dn:
    buffer_load_dwordx4 v2, s[52:55], s42 offen lds
    s_add_u32 m0, m0, 1024
    s_add_u32 s42, s42, {32*1280}
    s_add_u32 s46, s46, 1
    s_cmp_lt_u32 s46, 16
    s_cbranch_scc1 KF_dn
    v_mov_b32 v4, {L_IDX}
    s_waitcnt vmcnt(0)
    s_barrier
    ds_read_b64 v[16:17], v4
    s_branch KF_ffn2
KF_poller:
    s_cmp_ge_u32 s32, 24
    s_cbranch_scc1 KF_poll
    v_bfe_u32 v2, v0, 2, 2             ; r
    v_mul_u32_u24 v3, 20, v8
    v_add_u32 v2, v2, v3
    v_lshlrev_b32 v2, 4, v2
    v_and_b32 v3, 1, v0
    v_lshl_add_u32 v2, v3, 3, v2
    v_bfe_u32 v3, v0, 1, 1
    v_mul_u32_u24 v3, {UPO}, v3
    s_mov_b32 s42, {L_FF}
    v_add3_u32 v2, v2, v3, s42""")
    for s in range(20):
        for t in range(2):
            row = (80*(s >> 1) + 8*(s & 1) + 4*t) if s < 16 else (80*(2*(s - 16) + t) + 16)
            a(f"ds_read_b64_tr_b16 v[{AF+4*s+2*t}:{AF+4*s+2*t+1}], v2 offset:{16*row}")
    for i in range(4): a(f"v_mov_b32 v{BF+i}, 0x3f803f80\nv_mov_b32 v{CS+i}, 0\nv_mov_b32 v{AC+i}, 0")
    a("s_waitcnt lgkmcnt(0)")
    for s in range(20):
        a(f"v_mfma_f32_16x16x32_bf16 v[{CS}:{CS+3}], v[{AF+4*s}:{AF+4*s+3}], v[{BF}:{BF+3}], v[{CS}:{CS+3}]")
    a(f"""KF_poll:
    v_lshrrev_b32 v2, 2, v0
    v_and_b32 v3, 3, v0
    v_lshl_add_u32 v2, v2, 3, v3
    v_mul_u32_u24 v2, {BS}, v2
    s_mov_b32 s42, {BLK + B_KEY}
    s_mov_b32 s43, {BLK + B_KEY + 128*BS}
    s_mov_b32 s47, {SPIN}
KF_p2:
    buffer_load_dwordx2 v[188:189], v2, s[16:19], s42 offen sc1
    buffer_load_dwordx2 v[190:191], v2, s[16:19], s43 offen sc1
    s_sub_u32 s47, s47, 1
    s_cbranch_scc1 KF_p2d
    s_waitcnt vmcnt(0)
    v_max3_u32 v3, v188, v189, v190
    v_max_u32 v3, v3, v191
    v_cmp_eq_u32 vcc, -1, v3
    s_cbranch_vccnz KF_p2
KF_p2d:
    s_waitcnt vmcnt(0)""")
    st(a, 6)
    a(f"""v_max_u32 v13, v189, v191
    v_med3_u32 v13, v188, v190, v13
    v_max_u32 v12, v188, v190""")
    for mod in ("quad_perm:[1,0,3,2]", "quad_perm:[2,3,0,1]", "row_half_mirror", "row_mirror"):
        a(f"""v_mov_b32_dpp v5, v12 {mod} row_mask:0xf bank_mask:0xf
        v_max_u32_dpp v13, v13, v13 {mod} row_mask:0xf bank_mask:0xf
        v_med3_u32 v13, v12, v5, v13
        v_max_u32 v12, v12, v5""")
    for sw in ("v_permlane16_swap_b32", "v_permlane32_swap_b32"):
        a(f"""v_mov_b32 v5, v12
        v_mov_b32 v6, v13
        {sw} v5, v12
        {sw} v6, v13
        v_max_u32 v13, v13, v6
        v_med3_u32 v13, v12, v5, v13
        v_max_u32 v12, v12, v5""")
    def hc_base(d, i0, i1, t0, t1):
        a(f"""v_xor_b32 v{t0}, v{i0}, v{i1}
        v_and_b32 v{t1}, 1, v0
        v_cmp_gt_u32 vcc, 16, v{t0}
        v_cmp_eq_u32 s[36:37], 1, v{t1}
        s_and_b64 vcc, vcc, s[36:37]
        v_cndmask_b32 v{t1}, v{i0}, v{i1}, s[36:37]
        v_cndmask_b32 v{t0}, 0, 1, vcc
        v_lshrrev_b32 v{d}, 6, v{t1}
        v_mul_u32_u24 v{d}, {8*BS}, v{d}
        v_lshl_add_u32 v{d}, v{t0}, 8, v{d}
        v_bfe_u32 v{t0}, v{t1}, 4, 2
        v_lshl_add_u32 v{d}, v{t0}, 9, v{d}""")
    a(f"""v_and_b32 v12, 0x7ff, v12
    v_and_b32 v13, 0x7ff, v13
    v_sub_u32 v12, 2047, v12           ; idx0
    v_sub_u32 v13, 2047, v13           ; idx1
    v_mov_b32 v4, {L_IDX}
    ds_write_b64 v4, v[12:13]
    s_cmp_lt_u32 s32, 24
    s_cbranch_scc1 KF_ffn1
    v_mov_b32 v16, v12
    v_mov_b32 v17, v13
    s_waitcnt lgkmcnt(0)
    s_barrier
    s_branch KF_ffn2
KF_ffn1:""")
    hc_base(2, 12, 13, 5, 6)
    a(f"""v_lshl_add_u32 v3, v8, 3, v2
    v_lshl_add_u32 v4, v8, 4, v2
    s_mov_b32 s36, 0x00030003
    s_mov_b32 s37, 0x00030003
    s_mov_b32 s47, {SPIN}
    s_mov_b32 s46, 0
KF_p3:
    s_mov_b64 exec, s[36:37]""")
    for cg in range(8):
        a(f"""s_mov_b32 s42, {BLK + B_HC + cg*BS}
        buffer_load_dwordx4 v[{BF+8*cg}:{BF+8*cg+3}], v4, s[16:19], s42 offen sc1
        buffer_load_dwordx4 v[{BF+8*cg+4}:{BF+8*cg+7}], v4, s[16:19], s42 offen offset:64 sc1
        buffer_load_dwordx2 v[{BF+64+2*cg}:{BF+64+2*cg+1}], v3, s[16:19], s42 offen offset:128 sc1""")
    a(f"""buffer_load_dwordx4 v[{MT}:{MT+3}], v2, s[16:19], s42 offen offset:160 sc1
    s_cmp_lg_u32 s46, 0
    s_cbranch_scc1 KF_p3b
    s_mov_b32 s46, 1
    s_waitcnt lgkmcnt(0)
    s_barrier
KF_p3b:
    s_sub_u32 s47, s47, 1
    s_cbranch_scc1 KF_p3d
    s_waitcnt vmcnt(0)
    v_max3_u32 v5, v{MT}, v{MT+1}, v{MT+2}""")
    for i in range(40): a(f"v_max3_u32 v5, v5, v{BF+2*i}, v{BF+2*i+1}")
    a(f"""v_cmp_eq_u32 vcc, -1, v5
    s_cbranch_vccnz KF_p3
KF_p3d:
    s_waitcnt vmcnt(0)
    s_mov_b64 exec, -1""")
    st(a, 7)
    for s in range(20):
        a(f"v_mfma_f32_16x16x32_bf16 v[{AC}:{AC+3}], v[{AF+4*s}:{AF+4*s+3}], v[{BF+4*s}:{BF+4*s+3}], v[{AC}:{AC+3}]")
    a(f"""v_lshlrev_b32 v2, 4, v7
    v_lshl_add_u32 v2, v8, 3, v2
    s_add_u32 s42, s39, {B_ACT}""")
    for i in range(4):
        a(f"v_fma_f32 v{AC+i}, -v{MT}, v{CS+i}, v{AC+i}")
    for i in range(4):
        a(f"v_mul_f32 v{AC+i}, v{AC+i}, v{MT+1}")
    for i in range(4): a(f"v_mov_b32 v{CS+i}, v{AC+i}")
    for i in range(4): a(f"v_permlane32_swap_b32 v{CS+i}, v{AC+i}")
    for i in range(4): a(f"v_mul_f32 v{188+i}, {hx(-L2E)}, v{CS+i}")
    for i in range(4): a(f"v_exp_f32 v{188+i}, v{188+i}")
    for i in range(4): a(f"v_mul_f32 v{AC+i}, v{AC+i}, v{CS+i}")
    for i in range(4): a(f"v_add_f32 v{188+i}, 1.0, v{188+i}")
    for i in range(4): a(f"v_rcp_f32 v{188+i}, v{188+i}")
    for i in range(4): a(f"v_mul_f32 v{AC+i}, v{AC+i}, v{188+i}")
    a(f"""v_cvt_pk_bf16_f32 v{AC}, v{AC}, v{AC+1}
    v_cvt_pk_bf16_f32 v{AC+1}, v{AC+2}, v{AC+3}
    v_min_u32 v{AC}, -2, v{AC}
    v_min_u32 v{AC+1}, -2, v{AC+1}
    s_mov_b64 exec, 0x00030003
    buffer_store_dwordx2 v[{AC}:{AC+1}], v2, s[16:19], s42 offen sc1
    s_branch KF_done""")
    A2 = 24; B2 = 48; Y = 72
    a(f"""KF_ffn2:
    s_sub_u32 s42, s32, 24
    s_cmp_ge_u32 s42, 5
    s_cbranch_scc1 KF_done
    s_mul_i32 s43, s33, 5
    s_add_u32 s41, s42, s43
    v_bfe_u32 v2, v0, 2, 2
    v_lshl_add_u32 v2, v8, 3, v2
    v_lshlrev_b32 v2, 5, v2
    v_and_b32 v3, 3, v0
    v_lshl_add_u32 v2, v3, 3, v2
    s_mul_i32 s42, s20, 6144
    v_add_u32 v2, s42, v2""")
    for s in range(6):
        for t in range(2):
            a(f"ds_read_b64_tr_b16 v[{A2+4*s+2*t}:{A2+4*s+2*t+1}], v2 offset:{1024*s+128*t}")
    for i in range(4): a(f"v_mov_b32 v{Y+i}, 0")
    a("s_waitcnt lgkmcnt(0)")
    hc_base(12, 16, 17, 5, 13)
    a(f"""s_lshl_b32 s42, s41, 2
    v_add_u32 v2, s42, v8              ; Q
    v_mul_u32_u24 v3, 205, v2
    v_lshrrev_b32 v3, 10, v3           ; Q/5 = 4cg + g'
    v_mul_u32_u24 v4, 5, v3
    v_sub_u32 v4, v2, v4               ; q5
    v_lshrrev_b32 v5, 2, v3
    v_mul_u32_u24 v5, {BS}, v5
    v_add_u32 v12, v12, v5
    v_and_b32 v3, 3, v3                ; g'
    v_lshrrev_b32 v5, 1, v4
    v_lshlrev_b32 v5, 6, v5
    v_and_b32 v6, 1, v4
    v_lshl_add_u32 v5, v6, 3, v5
    v_cmp_eq_u32 vcc, 4, v4
    v_lshlrev_b32 v6, 4, v3
    v_lshlrev_b32 v3, 3, v3
    v_cndmask_b32 v3, v6, v3, vcc
    v_add3_u32 v14, v12, v5, v3
    v_mul_u32_u24 v13, 1280, v13
    v_lshl_add_u32 v13, v2, 3, v13
    v_mul_u32_u24 v2, {8*BS}, v8
    v_lshl_add_u32 v2, v7, 4, v2
    s_mul_i32 s42, s20, {32*BS}
    s_add_u32 s42, s42, {BLK + B_ACT}
    s_mov_b32 s40, {BLK + B_HC}
    s_mov_b32 s36, 0x00030003
    s_mov_b32 s37, 0x00030003
    s_mov_b32 s47, {SPIN}
    s_mov_b64 exec, s[36:37]
KF_p4:
    buffer_load_dwordx2 v[76:77], v14, s[16:19], s40 offen sc1
    buffer_load_dwordx4 v[80:83], v12, s[16:19], s40 offen offset:160 sc1""")
    for s in range(6):
        a(f"s_add_u32 s43, s42, {s*BS}\nbuffer_load_dwordx4 v[{B2+4*s}:{B2+4*s+3}], v2, s[16:19], s43 offen sc1")
    a(f"""s_sub_u32 s47, s47, 1
    s_cbranch_scc1 KF_p4d
    s_waitcnt vmcnt(0)
    v_max3_u32 v5, v76, v77, v80
    v_max3_u32 v5, v5, v81, v82""")
    for i in range(12): a(f"v_max3_u32 v5, v5, v{B2+2*i}, v{B2+2*i+1}")
    a(f"""v_cmp_eq_u32 vcc, -1, v5
    s_cbranch_vccnz KF_p4
KF_p4d:
    s_waitcnt vmcnt(0)
    s_mov_b64 exec, -1""")
    st(a, 9)
    for s in range(6):
        a(f"v_mfma_f32_16x16x32_bf16 v[{Y}:{Y+3}], v[{A2+4*s}:{A2+4*s+3}], v[{B2+4*s}:{B2+4*s+3}], v[{Y}:{Y+3}]")
    a(f"""s_lshl_b32 s42, s20, 10
    s_add_u32 s42, s42, {L_CMB}
    v_add_u32 v4, s42, v9
    s_mov_b32 s46, 0xffff0000
    v_mul_f32 v80, -v80, v81
    v_add_f32 v81, 1.0, v81
    v_lshlrev_b32 v84, 16, v76
    v_and_b32 v85, s46, v76
    v_lshlrev_b32 v86, 16, v77
    v_and_b32 v87, s46, v77
    ds_write_b128 v4, v[{Y}:{Y+3}]""")
    for i in range(4): a(f"v_fma_f32 v{84+i}, v{84+i}, v81, v80")
    a(f"""s_waitcnt lgkmcnt(0)
    s_barrier
    s_cmp_lg_u32 s20, 0
    s_cbranch_scc1 KF_done""")
    for w in range(1, 8): a(f"ds_read_b128 v[{20+4*w}:{23+4*w}], v4 offset:{1024*w}")
    for w in range(1, 8):
        a(f"s_waitcnt lgkmcnt({7-w})\nv_pk_add_f32 v[{Y}:{Y+1}], v[{Y}:{Y+1}], v[{20+4*w}:{21+4*w}]\nv_pk_add_f32 v[{Y+2}:{Y+3}], v[{Y+2}:{Y+3}], v[{22+4*w}:{23+4*w}]")
    for i in range(4): a(f"v_fma_f32 v{84+i}, v{Y+i}, v82, v{84+i}")
    a(f"""v_cvt_pk_bf16_f32 v84, v84, v85
    v_cvt_pk_bf16_f32 v85, v86, v87
    s_mov_b64 exec, s[36:37]
    buffer_store_dwordx2 v[84:85], v13, s[56:59], 0 offen
KF_done:""")
    st_flush(a, 1)
    a("KF_exit:\ns_endpgm")
    MX = 14
    def fm2b(): return f"v_mfma_f32_32x32x4_2b_bf16 v[{S[0]}:{S[0]+31}], v[{KT[0]}:{KT[0]+1}], v[{QT}:{QT+1}], 0"
    def fm16(t): return f"v_mfma_f32_32x32x16_bf16 v[{S[0]+16*t}:{S[0]+16*t+15}], v[{KM[t]}:{KM[t]+3}], v[{QM[0]}:{QM[0]+3}], v[{S[0]+16*t}:{S[0]+16*t+15}]"
    def fldK(): return f"""buffer_load_dwordx2 v[{KT[0]}:{KT[0]+1}], v{AKT}, s[16:19], s47 offen
    buffer_load_dwordx4 v[{KM[0]}:{KM[0]+3}], v{AKM}, s[16:19], s47 offen
    buffer_load_dwordx4 v[{KM[1]}:{KM[1]+3}], v{AKM}, s[16:19], s47 offen offset:2560"""
    a(f"""KF_fallback:
    s_mul_i32 s41, s40, 2560
    s_add_u32 s41, s41, s27
    v_lshlrev_b32 v12, 4, v10
    s_lshl_b32 s43, s26, 3
    v_add_u32 v12, s43, v12
    buffer_load_dwordx2 v[{QT}:{QT+1}], v12, s[16:19], s41 offen offset:1024
    buffer_load_dwordx4 v[{QM[0]}:{QM[0]+3}], v{AKM}, s[16:19], s41 offen
    v_mov_b32 v{MX}, 0xff800000
    s_mov_b32 s46, 0
    s_mov_b32 s47, s28
KF_fb_max:""")
    a(fldK()); a("s_waitcnt vmcnt(0)")
    a(fm2b()); a(fm16(0)); a(fm16(1))
    for i in range(16): a(f"v_max3_f32 v{MX}, v{MX}, v{S[0]+2*i}, v{S[0]+2*i+1}")
    a(f"""s_add_u32 s47, s47, 5120
    s_add_u32 s46, s46, 1
    s_cmp_lt_u32 s46, 32
    s_cbranch_scc1 KF_fb_max
    v_mov_b32 v12, v{MX}
    v_permlane32_swap_b32 v12, v{MX}
    v_max_f32 v{MX}, v12, v{MX}""")
    for i in range(16): a(f"v_mov_b32 v{Oo+i}, 0")
    a(f"""s_mov_b32 s46, 0
    s_mov_b32 s47, s28
    s_mov_b32 s43, s29
KF_fb_pv:""")
    a(fldK()); a("s_mov_b64 exec, s[44:45]")
    for i in range(4): a(f"buffer_load_dwordx4 v[{V[0]+4*i}:{V[0]+4*i+3}], v{AV}, s[16:19], s43 offen offset:{640*i}")
    a("s_mov_b64 exec, -1\ns_waitcnt vmcnt(0)")
    a(fm2b()); a(fm16(0)); a(fm16(1))
    for i in range(32): a(f"v_sub_f32 v{S[0]+i}, v{S[0]+i}, v{MX}")
    ex(0, 0, 32)
    for i in range(4): a(f"v_smfmac_f32_32x32x32_bf16 v[{Oo}:{Oo+15}], v[{V[0]+4*i}:{V[0]+4*i+3}], v[{S[0]+8*i}:{S[0]+8*i+7}], v{IDX}")
    a(f"""s_add_u32 s47, s47, 5120
    s_add_u32 s43, s43, 2560
    s_add_u32 s46, s46, 1
    s_cmp_lt_u32 s46, 32
    s_cbranch_scc1 KF_fb_pv
    s_nop 7
    v_mov_b32 v12, v{Oo+8}
    v_mov_b32 v13, v{Oo+8}
    v_permlane32_swap_b32 v12, v13
    s_branch KF_fin""")
    return dict(name="kf_kernel", lines=a.lines, vgpr=256, grid=256, block=512, lds=LDS)


def k1():
    gen1.stamp_begin = lambda a: (st0(a), st_init(a))
    gen1.stamp_mid = lambda a: st(a, 1)
    gen1.stamp_end = lambda a, *x: st_flush(a, 0)
    k = gen1.k1()
    L = k["lines"]
    txt = "\n".join(L)
    PF = "" if "nopf" not in X else "s_mov_b64 exec, 0"
    extra = f"""
K1_extra:
    s_load_dwordx2 s[40:41], s[0:1], 16
    s_load_dwordx4 s[44:47], s[0:1], 40
    s_load_dwordx2 s[48:49], s[0:1], 56
    s_and_b32 s32, s2, 7
    s_lshr_b32 s33, s2, 3
    s_lshl_b32 s34, s32, 2
    s_and_b32 s35, s33, 3
    s_add_u32 s34, s34, s35
    s_lshl_b32 s34, s34, 3
    s_lshr_b32 s35, s2, 5
    s_add_u32 s34, s34, s35
    s_mul_i32 s34, s34, {BS}
    s_add_u32 s34, s34, {BLK}
    s_lshl_b32 s35, s26, 10
    s_add_u32 s35, s35, s34
    v_lshlrev_b32 v1, 4, v0
    v_mov_b32 v4, -1
    v_mov_b32 v5, -1
    v_mov_b32 v6, -1
    v_mov_b32 v7, -1
    buffer_store_dwordx4 v[4:7], v1, s[16:19], s35 offen
    s_add_u32 s35, s35, 4096
    buffer_store_dwordx4 v[4:7], v1, s[16:19], s35 offen
    s_add_u32 s35, s35, 4096
    buffer_store_dwordx4 v[4:7], v1, s[16:19], s35 offen
    s_and_b32 s35, s26, 1
    s_lshl_b32 s35, s35, 10
    s_add_u32 s35, s35, s34
    s_add_u32 s35, s35, 12288
    buffer_store_dwordx4 v[4:7], v1, s[16:19], s35 offen
    s_lshl_b32 s36, s33, 2
    s_add_u32 s36, s36, s26
    s_mul_i32 s37, s36, 50
    v_min_u32 v2, 49, v0
    v_add_u32 v2, s37, v2
    v_lshlrev_b32 v2, 7, v2
    s_mul_i32 s37, s36, 24
    v_min_u32 v3, 23, v0
    v_add_u32 v3, s37, v3
    v_lshrrev_b32 v8, 1, v3
    v_mul_u32_u24 v8, 1280, v8
    v_and_b32 v3, 1, v3
    v_lshl_add_u32 v3, v3, 7, v8
    s_mul_i32 s37, s32, 160
    s_and_b32 s37, s37, 0xffffff80
    s_lshl_b32 s38, s33, 1
    s_and_b32 s39, s26, 1
    s_add_u32 s38, s38, s39
    s_mul_i32 s38, s38, 10
    v_min_u32 v8, 29, v0
    v_mul_u32_u24 v9, 86, v8
    v_lshrrev_b32 v9, 8, v9
    v_add_u32 v18, s38, v9
    v_mul_u32_u24 v18, 3072, v18
    v_mul_u32_u24 v9, 3, v9
    v_sub_u32 v8, v8, v9
    v_lshl_add_u32 v8, v8, 7, v18
    s_mul_i32 s38, s32, 384
    s_waitcnt lgkmcnt(0)
    s_and_b32 s41, s41, 0xffff
    s_mov_b32 s42, 819200
    s_mov_b32 s43, 0x20000
    s_cmp_lt_u32 s26, 2
    s_cselect_b32 s44, s44, s46
    s_cselect_b32 s45, s45, s47
    s_and_b32 s45, s45, 0xffff
    s_mov_b32 s46, 1966080
    s_mov_b32 s47, 0x20000
    s_and_b32 s49, s49, 0xffff
    s_mov_b32 s50, 1966080
    s_mov_b32 s51, 0x20000
    buffer_load_dword v20, v2, s[40:43], 0 offen
    buffer_load_dword v21, v8, s[44:47], s38 offen
    buffer_load_dword v22, v3, s[48:51], s37 offen
    s_cmp_eq_u32 s22, 15
    s_cbranch_scc1 K1_exit
    s_waitcnt vmcnt(23)
    s_barrier
    s_waitcnt vmcnt(15)
    s_barrier
    s_waitcnt vmcnt(7)
    s_barrier"""
    old = txt[txt.index("    s_cbranch_scc1 K1_ld_loop\n") + len("    s_cbranch_scc1 K1_ld_loop\n"):]
    old = old[:old.index("    s_waitcnt vmcnt(0)\n    s_barrier\n") + len("    s_waitcnt vmcnt(0)\n    s_barrier")]
    txt = txt.replace(old, extra.strip("\n"))
    o2 = txt[txt.index("K1_spare:\n"):txt.index("K1_exit:\n")]
    txt = txt.replace(o2, "K1_spare:\n    s_sub_u32 s26, s20, 4\n    s_cbranch_scc0 K1_extra\n")
    k["lines"] = txt.split("\n")
    return k

if __name__ == "__main__":
    path = [x for x in sys.argv[1:] if not x.startswith("--")][0]
    emit([k1(), kf()], path)
```

```python
import re

TRANS = ("v_exp_", "v_log_", "v_rcp_", "v_rsq_", "v_sqrt_", "v_sin_", "v_cos_")

def mfma_passes(op):
    if "32x32x4_2b" in op: return 16
    if "4x4x4" in op: return 2
    if "16x16x4_4b" in op: return 8
    if "32x32" in op: return 8
    if "16x16" in op: return 4
    raise ValueError(op)

_reg_re = re.compile(r"^(-|abs\()?([vsa])(\d+)\)?$|^(-|abs\()?([vsa])\[(\d+):(\d+)\]\)?$")
def regs_of(tok):
    tok = tok.strip()
    if tok in ("vcc", "vcc_lo", "vcc_hi"): return {("s", "vcc")}
    if tok in ("exec", "exec_lo", "exec_hi"): return {("s", "exec")}
    if tok == "m0": return {("s", "m0")}
    m = _reg_re.match(tok)
    if not m: return set()
    if m.group(2):
        return {(m.group(2), int(m.group(3)))}
    return {(m.group(5), i) for i in range(int(m.group(6)), int(m.group(7)) + 1)}

class Ins:
    def __init__(self, text):
        self.text = text
        t = text.split(";")[0].strip()
        self.label = None; self.op = None
        self.w = set(); self.r = set()
        self.kind = "other"
        if not t or t.startswith("."):
            self.kind = "none"; return
        if t.endswith(":"):
            self.label = t[:-1]; self.kind = "label"; return
        parts = t.split(None, 1)
        op = self.op = parts[0]
        rest = parts[1] if len(parts) > 1 else ""
        ops = []; cur = ""; depth = 0
        for ch in rest:
            if ch in "[(": depth += 1
            if ch in "])": depth -= 1
            if ch == "," and depth == 0:
                ops.append(cur.strip()); cur = ""
            else: cur += ch
        if cur.strip(): ops.append(cur.strip())
        mods = ""
        if ops:
            last = ops[-1].split(None, 1)
            ops[-1] = last[0]
            mods = last[1] if len(last) > 1 else ""
        self.ops = ops; self.mods = mods
        R = [regs_of(o) for o in ops]
        self.dpp = ("_dpp" in op) or ("quad_perm" in mods) or ("row_" in mods)
        self.sdwa_dst = ("dst_sel:WORD" in mods or "dst_sel:BYTE" in mods)
        if op.startswith("v_mfma") or op.startswith("v_smfmac"):
            self.kind = "mfma"; self.passes = mfma_passes(op)
            self.w = R[0]
            if op.startswith("v_smfmac"):
                self.C = R[0]; self.AB = R[1] | R[2] | R[3]
            else:
                self.C = R[3]; self.AB = R[1] | R[2]
            self.r = self.C | self.AB
        elif op.startswith("v_"):
            self.kind = "valu"
            self.trans = op.startswith(TRANS)
            self.dot = op.startswith("v_dot")
            if op.startswith("v_nop"):
                pass
            elif op.startswith("v_permlane") and "swap" in op:
                self.w = R[0] | R[1]; self.r = R[0] | R[1]
            elif op.startswith(("v_add_co", "v_sub_co", "v_subrev_co", "v_addc_co", "v_subb_co", "v_mad_u64", "v_div_scale")):
                self.w = R[0] | R[1]; self.r = set().union(*R[2:])
            else:
                self.w = R[0]; self.r = set().union(*R[1:]) if len(R) > 1 else set()
                if op.startswith(("v_fmac", "v_dot2c", "v_writelane", "v_pk_fmac")) or self.dpp or "UNUSED_PRESERVE" in mods:
                    self.r |= R[0]
                if op.startswith("v_cmpx"): self.w |= {("s", "exec")}
        elif op.startswith(("buffer_", "global_", "flat_")):
            self.kind = "vmem"
            self.lds = (" lds" in (" " + mods)) or ("_lds_" in op)
            isload = "_load" in op
            isatomic = "_atomic" in op
            self.wide_store = ("_store" in op) and ("x3" in op or "x4" in op)
            if op in ("buffer_wbl2", "buffer_inv"):
                pass
            elif self.lds:
                self.r = set().union(*R) | {("s", "m0")}
            elif isload:
                self.w = R[0]; self.r = set().union(*R[1:])
            elif isatomic and "sc0" in mods:
                if op.startswith("buffer_"):
                    self.w = R[0]; self.r = set().union(*R)
                else:
                    self.w = R[0]; self.r = set().union(*R[1:])
            else:
                self.r = set().union(*R)
                self.data = R[0] if op.startswith("buffer_") else R[1]
        elif op.startswith("ds_"):
            self.kind = "ds"
            if op.startswith(("ds_read", "ds_bpermute", "ds_permute", "ds_swizzle")) or "_rtn" in op:
                self.w = R[0]; self.r = set().union(*R[1:])
            else:
                self.r = set().union(*R)
        elif op.startswith("s_"):
            self.kind = "salu"
            if op.startswith(("s_cmp", "s_waitcnt", "s_barrier", "s_nop", "s_branch", "s_cbranch", "s_endpgm", "s_sleep", "s_setprio", "s_bitcmp")):
                self.r = set().union(*R) if R else set()
            else:
                self.w = R[0] if R else set(); self.r = set().union(*R[1:]) if len(R) > 1 else set()
                if "saveexec" in op: self.w |= {("s", "exec")}
    def states(self):
        if self.kind in ("none", "label"): return 0
        if self.op == "s_nop": return int(self.ops[0], 0) + 1
        return 1

def vonly(s): return {x for x in s if x[0] in "va"}
def sonly(s): return {x for x in s if x[0] == "s"}

def need(p, c):
    n = 0
    if p.kind == "valu":
        vw = vonly(p.w); sw = sonly(p.w)
        if c.kind == "mfma":
            if vw & c.r: n = max(n, 3 if p.dot else 2)
            if ("s", "exec") in sw: n = max(n, 4)
        if c.kind == "valu":
            if p.trans and not c.trans and (vw & c.r): n = max(n, 1)
            if c.dpp and (vw & c.r): n = max(n, 2)
            if c.dpp and ("s", "exec") in sw: n = max(n, 5)
            if c.op.startswith("v_permlane") and (vw & c.r): n = max(n, 2)
            if c.op.startswith(("v_readlane", "v_readfirstlane")) and (vw & c.r): n = max(n, 1)
            if sw & c.r:
                n = max(n, 4 if c.op.startswith(("v_readlane", "v_writelane")) else 2)
            if ("s", "vcc") in sw and c.op.startswith("v_div_fmas"): n = max(n, 4)
            if p.sdwa_dst and (vw & (c.r | c.w)): n = max(n, 1)
            if p.dot and (vw & (c.r | c.w)) and c.op != p.op: n = max(n, 3)
        if c.kind == "vmem" and (sw & c.r): n = max(n, 5)
        if c.kind in ("vmem", "ds") and p.dot and (vw & c.r): n = max(n, 3)
        if c.kind in ("vmem", "ds") and p.trans and (vw & c.r): n = max(n, 1)
    if p.kind == "mfma":
        P = p.passes
        full = {2: 5, 4: 8, 8: 12, 16: 20}[P]
        if c.kind == "mfma":
            if p.w & c.AB: n = max(n, full)
            if p.w & c.C:
                if p.w == c.C and c.passes == P: n = max(n, 2 if P == 2 else 0)
                else: n = max(n, P + 2)
            elif p.w & c.w:
                n = max(n, P + 2) if (p.w != c.w or c.passes != P) else max(n, 0)
        if c.kind in ("valu", "vmem", "ds"):
            if p.w & (c.r | c.w): n = max(n, full)
        if c.kind == "valu" and (p.C & c.w): n = max(n, P - 1)
    if p.kind == "salu" and ("s", "m0") in p.w:
        if c.kind == "vmem" and c.lds: n = max(n, 1)
    if p.kind == "vmem" and p.wide_store:
        if p.data & c.w: n = max(n, 2 if c.kind == "valu" else 1)
    if p.kind == "ds" and p.op.startswith(("ds_write_b128", "ds_write_b96")):
        pass
    return n

class Asm:
    def __init__(self):
        self.lines = []
    def __call__(self, s):
        for ln in s.split("\n"):
            ln = ln.rstrip()
            if ln.strip(): self.lines.append("    " + ln.strip() if not ln.strip().endswith(":") else ln.strip())
    def text(self): return "\n".join(self.lines) + "\n"

def fix_hazards(lines, verbose=True, name=""):
    inserted = []
    cache = {}
    def mk(l):
        if l not in cache: cache[l] = Ins(l)
        return cache[l]
    start = 0
    for _pass in range(2000):
        ins = [mk(l) for l in lines]
        labels = {x.label: i for i, x in enumerate(ins) if x.label}
        preds = {i: [] for i in range(len(ins))}
        for i, x in enumerate(ins):
            fall = True
            if x.kind == "salu":
                if x.op == "s_branch":
                    fall = False; preds[labels[x.ops[0]]].append(i)
                elif x.op.startswith("s_cbranch"):
                    preds[labels[x.ops[0]]].append(i)
                elif x.op == "s_endpgm": fall = False
            if fall and i + 1 < len(ins): preds[i + 1].append(i)
        found = None
        for i, c in enumerate(ins):
            if i < start or c.kind in ("none", "label"): continue
            worst = 0; wp = None
            stack = [(p, 0) for p in preds[i]]
            seen = {}
            while stack:
                j, d = stack.pop()
                if d >= 20: continue
                if j in seen and seen[j] <= d: continue
                seen[j] = d
                p = ins[j]
                if p.kind not in ("none", "label"):
                    n = need(p, c)
                    if n - d > worst: worst = n - d; wp = p
                nd = d + p.states()
                for q in preds[j]: stack.append((q, nd))
            if worst > 0:
                found = (i, worst, wp, c); break
        if not found: break
        i, worst, wp, c = found
        start = i
        inserted.append((worst, wp.text.strip(), c.text.strip()))
        k = worst
        new = []
        while k > 0:
            t = min(k, 16); new.append(f"    s_nop {t-1}"); k -= t
        lines = lines[:i] + new + lines[i:]
    if verbose:
        for w, a, b in inserted: print(f"[{name}] nop {w}: {a}  ->  {b}")
    return lines
```

```python
import sys, struct
sys.path.insert(0, "gen")
from asmlib import Asm, fix_hazards

NAME = "sequential_preLN__mha_block__moe_arch_mod__prompt"
STAMP = "--stamp" in sys.argv
X = set(); P = {}
for _o in sys.argv:
    if _o.startswith("--x="):
        for t in _o[4:].split(","):
            if ":" in t: P[t.split(":")[0]] = int(t.split(":")[1])
            else: X.add(t)
QB = 0x000000; KB = 0x280000; VB = 0x500000
BLK = 0x780000; BS = 14336
B_PST = 10240; B_HC = 11264; B_KEY = 13312; B_ACT = 13440
FLG = 0xB00000; TS = 0xD00000; WS_SIZE = 0xE00000
SPIN = 1 << P.get("spin", 18)
L2E = 1.4426950408889634
def hx(x): return hex(struct.unpack("<I", struct.pack("<f", x))[0])

def srd(a, d, b, size):
    a(f"s_mov_b32 s{d}, s{b}\ns_and_b32 s{d+1}, s{b+1}, 0xffff\ns_mov_b32 s{d+2}, {size}\ns_mov_b32 s{d+3}, 0x20000")
NST = 16
STAMPOFF = False
def st(a, i):
    if STAMP and not (STAMPOFF and i < 11): a(f"s_memrealtime s[70:71]\ns_waitcnt lgkmcnt(0)\ns_mov_b32 s{86+i}, s70")
def st_flush(a):
    if STAMP:
        st(a, NST - 1)
        a(f"""s_lshl_b32 s70, s2, 3
        s_add_u32 s70, s70, s20
        s_lshl_b32 s70, s70, 6
        s_add_u32 s70, s70, {TS}
        s_mov_b64 exec, 1""")
        for i in range(NST // 4):
            for k in range(4): a(f"v_mov_b32 v{4+k}, s{86+4*i+k}")
            a(f"buffer_store_dwordx4 v[4:7], off, s[16:19], s70 offset:{16*i}\ns_nop 1")
        a("s_waitcnt vmcnt(0)")

def kernel():
    a = Asm()
    SLOT = 32768; WOFF = 16384; STAB = 131072
    L_FF = 102400; UPO = 10304; L_RING = L_FF + 20608
    STEP = 2304; RSLOT = 4*STEP
    L_MISC = L_RING + 4*RSLOT; L_IDX = L_MISC; L_FAST = L_MISC + 16; L_CNT = L_MISC + 32; L_SP = L_MISC + 64; LDS = L_SP + 8*384
    S = [16, 48]; QM = [80, 84]; QT = 88; KT = [90, 94]; KM = [98, 102]
    XR = 108; WR = 118; F2 = 128; V = [160, 168]; O = [176, 192]
    AKM, AKT, AV, IDX, AWO, AK, AVL, ACN, AL4, FFV, WRO, TW, TG, TD, AF2, CW, CW3, CR, CR3, ONE, AOT, CWL, CRL, ACW = range(208, 232)
    TKV = 237
    MK = 232
    PL16, PTOK, PG, PROW, PXO = range(240, 245)
    def setup_scalars():
        a(f"""s_lshl_b32 s21, s33, 2
        s_and_b32 s22, s32, 3
        s_add_u32 s21, s21, s22
        s_lshr_b32 s22, s32, 2
        s_lshr_b32 s23, s21, 1
        s_and_b32 s26, s21, 1
        s_mul_i32 s27, s23, 163840
        s_lshr_b32 s30, s20, 2             ; kh
        s_and_b32 s31, s20, 3
        s_mul_i32 s55, s30, {2*RSLOT}
        s_mul_i32 s42, s31, {STEP}
        s_add_u32 s55, s55, s42
        s_add_u32 s55, s55, {L_RING}
        s_sub_u32 s23, s32, 24
        s_cmp_lt_u32 s23, 5
        s_cselect_b32 s23, 2, 0
        s_cmp_lt_u32 s32, 24
        s_cselect_b32 s23, 1, s23""")
    def setup_scalars2():
        a(f"""s_add_u32 s28, s27, {KB}           ; K stream
        s_mul_i32 s29, s21, 81920
        s_add_u32 s29, s29, {VB}           ; V stream
        s_lshl_b32 s40, s22, 3
        s_lshl_b32 s41, s31, 1
        s_add_u32 s40, s40, s41
        s_mul_i32 s41, s40, 2560
        s_add_u32 s41, s41, s27
        s_mov_b32 s44, 0x0033ffff
        s_mov_b32 s45, 0x0033ffff
        s_mul_i32 s35, s30, {32*2560}
        s_add_u32 s35, s35, s28
        s_mul_i32 s34, s31, 2560
        s_add_u32 s34, s34, s35
        s_add_u32 s34, s34, 5120
        s_mul_i32 s25, s30, {32*1280}
        s_add_u32 s25, s25, s29
        s_mul_i32 s54, s31, 1280
        s_add_u32 s54, s54, s25
        s_add_u32 s54, s54, {1280 - 1024}
        s_lshl_b32 s39, s21, 3
        s_add_u32 s39, s39, s22
        s_mul_i32 s39, s39, {BS}
        s_add_u32 s39, s39, {BLK}""")
    def setup_scalars3():
        srd(a, 8, 68, 819200)
        srd(a, 48, 72, 1280)
        srd(a, 56, 80, 2621440)
        a(f"""s_cmp_eq_u32 s30, 0
        s_cselect_b32 s64, s74, s76
        s_cselect_b32 s65, s75, s77
        s_and_b32 s65, s65, 0xffff
        s_mov_b32 s66, 1966080
        s_mov_b32 s67, 0x20000
        s_mov_b32 s60, s78
        s_and_b32 s61, s79, 0xffff
        s_mov_b32 s62, 1966080
        s_mov_b32 s63, 0x20000             ; down
        s_mul_i32 s37, s20, 7680
        s_mul_i32 s38, s20, 960
        s_mul_i32 s47, s30, {UPO}
        s_lshl_b32 s43, s31, 10
        s_add_u32 s47, s47, s43
        s_mul_i32 s43, s20, 2560
        s_cmp_eq_u32 s23, 2
        s_cselect_b32 s47, s43, s47
        s_add_u32 s47, s47, {L_FF}
        s_mov_b32 s46, 0""")
    def setup_vectors(tag):
        a(f"""v_lshlrev_b32 v{PL16}, 4, v0
        v_and_b32 v10, 31, v0
        v_lshlrev_b32 v11, 4, v10
        v_lshrrev_b32 v12, 5, v0
        s_mul_i32 s42, s26, 1536
        v_add_u32 v{AKM}, s42, v{PL16}
        v_mul_u32_u24 v13, 2560, v12
        s_lshl_b32 s43, s26, 3
        s_add_u32 s43, s43, 1024
        v_add3_u32 v{AKT}, v13, v11, s43
        v_lshlrev_b32 v13, 3, v10
        v_lshl_add_u32 v{AOT}, v12, 2, v13
        v_cmp_lt_u32 vcc, 19, v10
        v_mul_u32_u24 v13, 320, v12
        v_add_u32 v13, v13, v11
        v_cndmask_b32 v14, 0, 32, vcc
        v_sub_u32 v{AV}, v13, v14
        v_and_b32 v13, 27, v10
        v_cmp_eq_u32 vcc, 18, v13
        v_mov_b32 v14, 0x3f803f80
        v_mov_b32 v{IDX}, 0xdddddddd
        v_cndmask_b32 v14, 0, v14, vcc
        v_mul_u32_u24 v13, 26, v0
        v_lshrrev_b32 v13, 8, v13
        v_mul_u32_u24 v13, {1280-160}, v13
        s_mul_i32 s24, s22, 160
        v_add3_u32 v{AWO}, v13, v{PL16}, s24
        v_and_b32 v{PTOK}, 15, v0
        v_lshrrev_b32 v{PG}, 4, v0
        s_lshl_b32 s42, s21, 6
        s_lshl_b32 s43, s31, 4
        s_add_u32 s42, s42, s43
        v_add_u32 v{PROW}, s42, v{PTOK}
        v_mul_u32_u24 v13, 40, v{PG}
        v_add_u32 v{WRO}, s24, v13
        v_mul_u32_u24 v13, 1280, v{PROW}
        v_add_u32 v{PXO}, v13, v{WRO}
        s_mul_i32 s42, s30, {2*RSLOT}
        s_add_u32 s42, s42, {L_RING}
        v_add_u32 v{AK}, s42, v{PL16}
        s_add_u32 s42, s42, 1024
        v_add_u32 v{AVL}, s42, v{AV}
        s_lshl_b32 s42, s30, 2
        s_add_u32 s42, s42, {L_CNT + 4}
        v_mov_b32 v{ACN}, s42
        v_mov_b32 v{ACW}, {L_CNT + 12}
        v_lshlrev_b32 v{AL4}, 2, v0
        v_mov_b32 v{ONE}, 1
        s_xor_b32 s42, s30, 1
        s_mul_i32 s42, s42, {2*RSLOT}
        s_mul_i32 s43, s31, {STEP}
        s_add_u32 s42, s42, s43
        s_add_u32 s42, s42, {L_RING}
        v_add_u32 v{CW}, s55, v{PL16}
        v_add_u32 v{CR}, s42, v{PL16}
        v_lshlrev_b32 v13, 2, v10
        v_add_u32 v{CWL}, s55, v13
        v_add_u32 v{CRL}, s42, v13
        v_cmp_gt_u32 vcc, 16, v0
        s_mul_i32 s43, s20, 384
        s_add_u32 s43, s43, {L_SP - 128 - 2176}
        v_mov_b32 v11, s43
        v_mov_b32 v12, s55
        v_cndmask_b32 v11, v11, v12, vcc
        v_lshl_add_u32 v{CW3}, v0, 3, v11
        s_xor_b32 s43, s20, 4
        s_mul_i32 s43, s43, 384
        s_add_u32 s43, s43, {L_SP - 128 - 2176}
        v_mov_b32 v11, s43
        v_mov_b32 v12, s42
        v_cndmask_b32 v11, v11, v12, vcc
        v_lshl_add_u32 v{CR3}, v0, 3, v11
        s_lshl_b32 s42, s32, 3
        s_add_u32 s42, s42, s20
        s_mul_i32 s43, s42, 3200
        v_min_u32 v11, 24, v0
        v_lshl_add_u32 v{TW}, v11, 7, s43
        s_mul_i32 s43, s42, {6*1280}
        s_mul_i32 s24, s33, 160
        s_and_b32 s24, s24, 0xffffff80
        s_add_u32 s43, s43, s24
        v_min_u32 v11, 11, v0
        v_lshrrev_b32 v12, 1, v11
        v_mul_u32_u24 v12, {1280 - 256}, v12
        v_lshl_add_u32 v11, v11, 7, v12
        v_add_u32 v{TD}, s43, v11
        s_lshl_b32 s42, s32, 2
        s_add_u32 s42, s42, s31
        s_mul_i32 s42, s42, {5*3072}
        s_mul_i32 s43, s33, 384
        s_add_u32 s42, s42, s43
        v_min_u32 v11, 14, v0
        v_mul_u32_u24 v12, 86, v11
        v_lshrrev_b32 v12, 8, v12
        v_mul_u32_u24 v12, {3072 - 384}, v12
        v_lshl_add_u32 v11, v11, 7, v12
        v_add_u32 v{TG}, s42, v11
        s_lshl_b32 s42, s22, 1
        s_add_u32 s42, s42, s26
        s_lshl_b32 s42, s42, 3
        s_add_u32 s42, s42, s20
        s_mul_i32 s42, s42, 1280
        s_add_u32 s42, s42, s27
        s_add_u32 s42, s42, {KB}
        s_lshl_b32 s43, s22, 3
        s_add_u32 s43, s43, s20
        s_mul_i32 s43, s43, 1280
        s_mul_i32 s24, s21, 81920
        s_add_u32 s43, s43, s24
        s_add_u32 s43, s43, {VB - 1280}
        v_cmp_gt_u32 vcc, 10, v0
        v_mov_b32 v11, s43
        v_mov_b32 v12, s42
        v_cndmask_b32 v11, v11, v12, vcc
        v_min_u32 v12, 19, v0
        v_lshl_add_u32 v{TKV}, v12, 7, v11
        s_mul_i32 s42, s33, 24
        s_add_u32 s42, s42, s32
        s_lshl_b32 s42, s42, 4
        s_mul_i32 s43, s31, {64*3072}
        s_add_u32 s42, s42, s43
        v_mul_u32_u24 v11, 3072, v0
        v_add_u32 v{FFV}, s42, v11
        s_cmp_eq_u32 s23, 2
        s_cbranch_scc0 S_nf2{tag}
        s_mul_i32 s42, s33, 5
        s_add_u32 s42, s42, s32
        s_sub_u32 s42, s42, 24
        s_lshl_b32 s42, s42, 5
        s_mul_i32 s43, s20, {192*1280}
        s_add_u32 s42, s42, s43
        v_lshrrev_b32 v11, 1, v0
        v_mul_u32_u24 v11, 1280, v11
        v_and_b32 v12, 1, v0
        v_lshl_add_u32 v11, v12, 4, v11
        v_add_u32 v{FFV}, s42, v11
S_nf2{tag}:
        v_bfe_u32 v11, v0, 2, 2
        v_lshl_add_u32 v11, v{PG}, 3, v11
        v_lshlrev_b32 v11, 5, v11
        v_and_b32 v12, 3, v0
        v_lshl_add_u32 v11, v12, 3, v11
        s_mul_i32 s42, s20, 2560
        s_add_u32 s42, s42, {L_FF}
        v_add_u32 v{AF2}, s42, v11""")
        for i in range(16): a(f"v_mov_b32 v{V[0]+i}, v14")
        for i in range(32): a(f"v_mov_b32 v{O[0]+i}, 0")
        for i in range(4): a(f"v_mov_b32 v{MK+i}, -1")
    assert LDS <= 163840 and L_MISC >= STAB + 1536
    if STAMP:
        a("s_memrealtime s[86:87]")
    a(f"""s_cmp_ge_u32 s2, 256
    s_cbranch_scc1 L_exit
    s_load_dwordx16 s[64:79], s[0:1], 0
    s_load_dwordx4 s[80:83], s[0:1], 64
    s_load_dwordx2 s[84:85], s[0:1], 80
    v_lshrrev_b32 v1, 6, v0
    v_and_b32 v0, 63, v0
    s_and_b32 s33, s2, 7
    v_readfirstlane_b32 s20, v1
    s_lshr_b32 s32, s2, 3              ; member j
    s_lshr_b32 s21, s32, 1
    s_and_b32 s22, s32, 1
    s_mov_b32 s6, 2621440
    s_mov_b32 s7, 0x20000
    s_mov_b32 s10, 2457600
    s_mov_b32 s11, 0x20000
    s_mov_b32 s14, 256
    s_mov_b32 s15, 0x20000
    s_mov_b32 s18, {WS_SIZE}
    s_mov_b32 s19, 0x20000
    s_getreg_b32 s3, hwreg(HW_REG_XCC_ID, 0, 3)
    s_cmp_lt_u32 s20, 4
    s_cbranch_scc1 A_consumer""")
    def bases():
        a("""s_waitcnt lgkmcnt(0)
        s_mov_b32 s4, s64
        s_and_b32 s5, s65, 0xffff
        s_mov_b32 s8, s66
        s_and_b32 s9, s67, 0xffff
        s_mov_b32 s12, s82
        s_and_b32 s13, s83, 0xffff
        s_mov_b32 s16, s84
        s_and_b32 s17, s85, 0xffff""")
        if STAMP:
            for i in range(1, NST): a(f"s_mov_b32 s{86+i}, -1")
    ra, rb_, rc = P.get("ra", 1), P.get("rb", 1), P.get("rc", 3)
    XF = "nt" if "xnt" in X else ""; WF_ = "nt" if "wnt" in X else ""
    a(f"""s_sub_u32 s26, s20, 4          ; lw
    s_mul_i32 s52, s21, {ra}
    s_mul_i32 s28, s22, {rb_}
    s_add_u32 s52, s52, s28
    s_mul_i32 s28, s33, {rc}
    s_add_u32 s52, s52, s28
    s_mul_i32 s28, s52, 6554
    s_lshr_b32 s28, s28, 16
    s_mul_i32 s28, s28, 10
    s_sub_u32 s52, s52, s28
    v_lshrrev_b32 v1, 3, v0            ; r8
    v_and_b32 v2, 7, v0
    v_lshrrev_b32 v3, 1, v1
    v_xor_b32 v2, v2, v3
    s_lshl_b32 s28, s21, 7
    s_lshl_b32 s29, s26, 5
    s_add_u32 s28, s28, s29
    v_add_u32 v1, s28, v1
    v_mul_u32_u24 v1, 1280, v1
    v_xor_b32 v3, 4, v2
    v_lshl_add_u32 v16, v2, 4, v1
    v_lshl_add_u32 v17, v3, 4, v1
    v_add_u32 v18, {2*(10240-1024)}, v16
    v_add_u32 v17, {1*(10240-1024)}, v17
    v_add_u32 v19, {2*(10240-1024)}, v17
    v_lshrrev_b32 v1, 4, v0            ; r4
    v_and_b32 v2, 15, v0
    v_lshlrev_b32 v3, 1, v1
    v_xor_b32 v2, v2, v3
    v_xor_b32 v3, 8, v2
    s_mul_i32 s28, s33, 160
    s_mul_i32 s29, s22, 1280
    s_add_u32 s29, s29, s28
    s_mul_i32 s30, s22, 80
    s_add_u32 s30, s30, s28
    s_add_u32 s30, s30, {2560-160}     ; V run - 160
    v_mov_b32 v4, s29
    v_mov_b32 v5, s30
    v_cmp_gt_u32 vcc, 10, v2
    v_cmp_gt_u32 s[34:35], 10, v3
    v_min_u32 v2, 14, v2
    v_min_u32 v3, 14, v3
    v_cndmask_b32 v6, v5, v4, vcc
    v_cndmask_b32 v7, v5, v4, s[34:35]
    v_lshl_add_u32 v6, v2, 4, v6
    v_lshl_add_u32 v7, v3, 4, v7
    s_lshl_b32 s28, s26, 4
    v_add_u32 v1, s28, v1
    v_mul_u32_u24 v1, 3840, v1
    v_add_u32 v20, v6, v1
    v_add_u32 v22, v7, v1
    v_add_u32 v21, {1*(15360-1024)}, v20
    v_add_u32 v23, {3*(15360-1024)}, v22
    v_add_u32 v22, {2*(15360-1024)}, v22
    s_lshl_b32 s53, s26, 12
    s_mov_b32 s54, s26""")
    bases()
    D = P.get("depth", 2); NKL = P.get("nkl", 4); NVL = P.get("nvl", 4)
    spf = [("s[16:19], s45", 128*i + 60) for i in range(20)] + [("s[16:19], s46", 128*i + 60) for i in range(NKL)] + [("s[16:19], s47", 128*i + 60) for i in range(NVL)]
    if "nospf" in X: spf = []
    for c in range(10):
        if c >= D: a(f"s_waitcnt vmcnt({8*(D-1)})\ns_barrier")
        a(f"""s_lshl_b32 s28, s52, 7
        s_mul_i32 s29, s52, {64*3840}
        s_add_u32 m0, s53, {(c & 3)*SLOT}
        s_add_u32 s52, s52, 1""")
        for j in range(4): a(f"buffer_load_dwordx4 v{16+j}, s[4:7], s28 offen offset:{j*1024} {XF} lds")
        a(f"s_add_u32 m0, s53, {(c & 3)*SLOT + WOFF}\ns_cmp_eq_u32 s52, 10")
        for j in range(4): a(f"buffer_load_dwordx4 v{20+j}, s[8:11], s29 offen offset:{j*1024} {WF_} lds")
        a("s_cselect_b32 s52, 0, s52")
        if c == P.get("suc", 0):
            a(f"""s_lshl_b32 s34, s33, 2
            s_and_b32 s35, s32, 3
            s_add_u32 s34, s34, s35            ; head
            s_lshr_b32 s35, s34, 1
            s_mul_i32 s35, s35, 163840
            s_lshr_b32 s36, s32, 2             ; qb
            s_lshl_b32 s37, s36, 1
            s_and_b32 s38, s34, 1
            s_add_u32 s37, s37, s38            ; 0..15
            s_lshl_b32 s38, s37, 2
            s_add_u32 s38, s38, s26
            s_mul_i32 s45, s38, 2560
            s_add_u32 s45, s45, s35
            s_lshr_b32 s46, s38, 5
            s_mul_i32 s46, s46, {32*2560}
            s_and_b32 s38, s38, 31
            s_mul_i32 s38, s38, {128*NKL}
            s_add_u32 s46, s46, s38
            s_add_u32 s46, s46, s35
            s_add_u32 s46, s46, {KB}           ; 4 K lines
            s_lshl_b32 s36, s36, 2
            s_add_u32 s36, s36, s26
            s_lshr_b32 s47, s36, 4
            s_mul_i32 s47, s47, {32*1280}
            s_and_b32 s36, s36, 15
            s_mul_i32 s36, s36, {128*NVL}
            s_add_u32 s47, s47, s36
            s_mul_i32 s34, s34, 81920
            s_add_u32 s47, s47, s34
            s_add_u32 s47, s47, {VB}           ; 4 V lines""")
            setup_scalars(); setup_vectors("L")
        if c >= 2:
            for r, o in spf[4*(c-2):4*(c-1)]: a(f"s_buffer_load_dwordx2 s[70:71], {r} offset:{o}")
    for c in range(D): a(f"s_waitcnt vmcnt({8*(D-1-c)})\ns_barrier")
    a(f"""s_cmp_lg_u32 s54, 0
    s_cbranch_scc1 A_ld_end
    v_and_b32 v2, 7, v0
    v_lshlrev_b32 v3, 2, v2
    s_lshl_b32 s28, s33, 5
    s_mov_b32 s47, {SPIN}
A_dbg:
    buffer_load_dword v4, v3, s[12:15], s28 offen sc1
    s_waitcnt vmcnt(0)
    v_and_b32 v4, 0xffff, v4
    v_add_u32_dpp v5, v4, v4 quad_perm:[1,0,3,2] row_mask:0xf bank_mask:0xf
    v_add_u32_dpp v5, v5, v5 quad_perm:[2,3,0,1] row_mask:0xf bank_mask:0xf
    v_add_u32_dpp v5, v5, v5 row_half_mirror row_mask:0xf bank_mask:0xf
    s_sub_u32 s47, s47, 1
    s_cbranch_scc1 A_dbgd
    v_cmp_gt_u32 vcc, 32, v5
    s_cbranch_vccnz A_dbg
A_dbgd:
    v_readlane_b32 s28, v4, s3
    s_cmp_eq_u32 s28, 32
    s_cselect_b32 s28, {0 if "slow" in X else 1}, 0
    v_mov_b32 v4, s28
    v_mov_b32 v5, 0
    v_mov_b32 v6, {L_FAST}
    ds_write_b32 v6, v4
    ds_write_b32 v6, v5 offset:{L_CNT - L_FAST}
    ds_write2_b32 v6, v5, v5 offset0:{(L_CNT - L_FAST)//4 + 1} offset1:{(L_CNT - L_FAST)//4 + 2}
    ds_write_b32 v6, v5 offset:{L_CNT - L_FAST + 12}
    s_waitcnt lgkmcnt(0)
A_ld_end:
    s_barrier""")
    a("s_barrier\ns_branch B_setup")
    ACC0 = 80; GR = 144; RS = 152; CSS = 156
    a("A_consumer:")
    bases()
    a(f"""s_lshl_b32 s36, s33, 9
    s_lshl_b32 s37, s32, 4
    s_add_u32 s36, s36, {FLG}
    s_add_u32 s37, s37, s36
    s_lshl_b32 s38, s33, 3
    s_add_u32 s38, s38, s3
    s_lshl_b32 s38, s38, 2
    s_cmp_eq_u32 s20, 0
    s_cbranch_scc0 A_c1
    v_mov_b32 v16, 0
    v_mov_b32 v17, 0
    v_mov_b32 v18, 0
    v_mov_b32 v19, 0
    v_mov_b32 v20, 1
    s_mov_b64 exec, 1
    buffer_store_dwordx4 v[16:19], off, s[16:19], s37 sc1
    {"" if "mkA" in X else "s_waitcnt vmcnt(0)"}
    {"" if "mkA" in X else "buffer_atomic_add v20, off, s[12:15], s38 sc1"}
    s_mov_b64 exec, -1
A_c1:
    s_cmp_eq_u32 s20, 1
    s_cbranch_scc0 A_c2
    s_getpc_b64 s[40:41]
A_pc:
    s_lshl_b32 s28, s32, 3
    v_add_u32 v16, s28, v0
    v_lshlrev_b32 v16, 7, v16
    v_min_u32 v16, L_end - A_pc - 4, v16
    s_mov_b64 exec, 0xff
    global_load_dword v236, v16, s[40:41]
    s_mov_b64 exec, -1
A_c2:""")
    setup_scalars(); setup_vectors("C")
    if "mkA" in X:
        a(f"""s_lshl_b32 s39, s21, 3
        s_add_u32 s39, s39, s22
        s_mul_i32 s39, s39, {BS}
        s_mul_i32 s42, s20, 3584
        s_add_u32 s39, s39, s42
        s_add_u32 s39, s39, {BLK}""")
        for o in (0, 1024, 2048, 2560): a(f"buffer_store_dwordx4 v[{MK}:{MK+3}], v{PL16}, s[16:19], s39 offen offset:{o} sc1")
    a(f"""s_lshr_b32 s21, s32, 1
    s_and_b32 s22, s32, 1
    s_lshr_b32 s26, s20, 1             ; tw
    s_and_b32 s27, s20, 1              ; fw
    v_and_b32 v13, 15, v0              ; n
    v_lshrrev_b32 v14, 4, v0           ; kg / g
    v_lshrrev_b32 v1, 1, v13
    v_xor_b32 v1, v1, v14
    v_lshlrev_b32 v1, 4, v1
    v_lshl_add_u32 v1, v13, 7, v1
    s_lshl_b32 s28, s26, 13
    v_add_u32 v2, s28, v1
    v_xor_b32 v3, 64, v2
    v_bfe_u32 v1, v0, 2, 2             ; r
    v_and_b32 v15, 1, v14
    v_lshl_add_u32 v15, v15, 2, v1     ; phi
    s_lshl_b32 s28, s27, 2
    v_xor_b32 v15, s28, v15
    v_lshlrev_b32 v15, 5, v15
    v_lshl_add_u32 v1, v14, 3, v1      ; 8kg + r
    v_lshl_add_u32 v15, v1, 8, v15
    v_and_b32 v1, 3, v0
    v_lshl_add_u32 v15, v1, 3, v15
    v_add_u32 v4, {WOFF}, v15
    v_xor_b32 v5, 32, v4
    v_xor_b32 v6, 64, v4
    v_xor_b32 v7, 0x60, v4
    v_bfe_u32 v1, v0, 1, 1
    v_lshrrev_b32 v15, 5, v0
    v_cmp_eq_u32 vcc, v1, v15
    v_mov_b32 v8, 0x3f803f80
    v_and_b32 v1, 1, v0
    v_cndmask_b32 v8, 0, v8, vcc
    v_cmp_eq_u32 vcc, 0, v1
    v_mov_b32 v12, 0xeeee
    v_mov_b32 v15, 0x4444
    v_mov_b32 v9, v8
    v_mov_b32 v10, v8
    v_mov_b32 v11, v8
    v_cndmask_b32 v12, v12, v15, vcc""")
    for i in range(ACC0, 160): a(f"v_mov_b32 v{i}, 0")
    def reads(p, ks):
        b = 16 + 32*p
        out = []
        for i in range(4):
            out.append(f"ds_read_b128 v[{b+4*i}:{b+4*i+3}], v{2+ks} offset:{2048*i}")
            out.append(f"ds_read_b64_tr_b16 v[{b+16+4*i}:{b+17+4*i}], v{4+i} offset:{ks*8192}")
            out.append(f"ds_read_b64_tr_b16 v[{b+18+4*i}:{b+19+4*i}], v{4+i} offset:{ks*8192+1024}")
        return out
    a(f"s_mov_b32 s29, 0\ns_mov_b32 s30, {SLOT}")
    if "mkA" in X: a("s_waitcnt vmcnt(0)")
    a("s_barrier")
    st(a, 1)
    for r in reads(0, 0): a(r)
    if "mkA" in X:
        a("""s_cmp_eq_u32 s20, 0
        s_cbranch_scc0 A_noan
        v_mov_b32 v1, 0x10001
        s_mov_b64 exec, 1
        buffer_atomic_add v1, off, s[12:15], s38 sc1
        s_mov_b64 exec, -1
A_noan:""")
    for w in (1, 2, 3): a(f"s_cmp_eq_u32 s20, {w}\ns_cbranch_scc1 A_loop{w}")
    for w in range(4):
        tw, fw = w >> 1, w & 1
        a(f".p2align 3\nA_loop{w}:")
        for ks in range(2):
            p = ks; b = 16 + 32*p
            Xf = [f"v[{b+4*i}:{b+4*i+3}]" for i in range(4)]; Wf = [f"v[{b+16+4*i}:{b+19+4*i}]" for i in range(4)]
            a("s_waitcnt lgkmcnt(0)")
            if ks == 1:
                a(f"""s_add_u32 s29, s29, 1
                s_and_b32 s28, s29, 3
                s_cselect_b32 s28, s30, {(-3*SLOT) & 0xffffffff}
                s_barrier""")
            rd = reads(1 - p, 1 - ks)
            mf = []
            for bb in range(4):
                for aa in range(4):
                    acc = ACC0 + 16*bb + 4*aa
                    o = (Xf[aa], Wf[bb]) if (fw == 1 and bb > 0) else (Wf[bb], Xf[aa])
                    mf.append(f"v_mfma_f32_16x16x32_bf16 v[{acc}:{acc+3}], {o[0]}, {o[1]}, v[{acc}:{acc+3}]")
            for i in range(2):
                mf.append(f"v_mfma_f32_16x16x32_bf16 v[{GR+4*i}:{GR+4*i+3}], {Xf[2*fw+i]}, {Xf[2*fw+i]}, v[{GR+4*i}:{GR+4*i+3}]")
            mf.append(f"v_smfmac_f32_16x16x64_bf16 v[{RS}:{RS+3}], v[8:11], v[{b+8*fw}:{b+8*fw+7}], v12")
            mf.append(f"v_smfmac_f32_16x16x64_bf16 v[{CSS}:{CSS+3}], v[8:11], v[{b+16+8*tw}:{b+16+8*tw+7}], v12")
            fill = []
            if ks == 1:
                fill = ["v_add_u32 v2, s28, v2\nv_add_u32 v4, s28, v4", rd[0], rd[1], rd[2] + "\nv_add_u32 v5, s28, v5", rd[3], rd[4], rd[5] + "\nv_add_u32 v6, s28, v6",
                        rd[6], rd[7], rd[8] + "\nv_add_u32 v7, s28, v7", rd[9], rd[10], rd[11], "v_add_u32 v3, s28, v3"]
            else:
                fill = rd
            for i, m in enumerate(mf):
                a(m)
                if i < len(fill): a(fill[i])
        a(f"s_cmp_lt_u32 s29, 10\ns_cbranch_scc1 A_loop{w}")
        if w < 3: a("s_branch A_epi")
    qscale = L2E * (20 ** -0.5)
    a("A_epi:\ns_waitcnt lgkmcnt(0)")
    st(a, 2)
    a(f"""v_and_b32 v1, 3, v0
    v_cmp_eq_u32 vcc, 1, v1
    v_cmp_eq_u32 s[40:41], 2, v1
    v_cmp_eq_u32 s[42:43], 3, v1
    s_lshl_b32 s28, s20, 7
    s_add_u32 s28, s28, {STAB}
    v_lshl_add_u32 v15, v13, 2, s28
    s_lshl_b32 s31, s27, 1
    s_add_u32 s31, s31, s26
    s_lshl_b32 s31, s31, 7
    s_add_u32 s31, s31, {STAB}
    v_lshl_add_u32 v16, v13, 2, s31
    s_mov_b32 s34, {hx(1.0/640)}""")
    for i in range(2):
        g = GR + 4*i
        a(f"""v_cndmask_b32 v{g}, v{g}, v{g+1}, vcc
        v_cndmask_b32 v{g}, v{g}, v{g+2}, s[40:41]
        v_cndmask_b32 v{g}, v{g}, v{g+3}, s[42:43]
        v_add_f32 v{RS+2*i}, v{RS+2*i}, v{RS+2*i+1}
        v_add_f32 v{CSS+2*i}, v{CSS+2*i}, v{CSS+2*i+1}
        v_mul_f32 v{RS+2*i}, s34, v{RS+2*i}
        v_mul_f32 v{g}, s34, v{g}
        v_fma_f32 v{g}, -v{RS+2*i}, v{RS+2*i}, v{g}
        v_max_f32 v{g}, 0, v{g}
        v_add_f32 v{g}, {hx(1e-5)}, v{g}
        v_rsq_f32 v{g}, v{g}""")
    a(f"""s_mov_b32 exec_lo, 0x00f0000f
    s_mov_b32 exec_hi, 0xf0000f00
    v_mul_f32 v{RS}, -v{RS}, v{GR}
    v_mul_f32 v{RS+2}, -v{RS+2}, v{GR+4}
    ds_write2_b32 v15, v{GR}, v{GR+4} offset0:0 offset1:16
    ds_write2_b32 v15, v{RS}, v{RS+2} offset0:128 offset1:144
    ds_write_b32 v16, v{CSS} offset:1024
    ds_write_b32 v16, v{CSS+2} offset:1088
    s_mov_b64 exec, -1
    s_lshl_b32 s35, s21, 2
    s_lshl_b32 s28, s26, 1
    s_add_u32 s35, s35, s28
    s_mul_i32 s40, s35, 2560
    s_mul_i32 s28, s33, {2*163840}
    s_add_u32 s40, s40, s28
    s_mul_i32 s28, s22, {KB}
    s_add_u32 s40, s40, s28            ; Q/K base
    v_and_b32 v1, 31, v0
    v_and_b32 v2, 3, v0
    v_bfe_u32 v3, v0, 2, 2
    v_lshl_add_u32 v2, v3, 3, v2
    v_bfe_u32 v3, v0, 4, 1
    v_lshl_add_u32 v2, v3, 2, v2
    s_cmp_eq_u32 s22, 0
    s_cselect_b64 vcc, -1, 0
    s_cselect_b32 s34, {hx(qscale)}, 1.0
    v_cndmask_b32 v1, v2, v1, vcc
    v_lshrrev_b32 v2, 5, v0
    v_lshlrev_b32 v1, 4, v1
    v_lshl_add_u32 v1, v2, 9, v1       ; m*16 + (lane>>5)*512
    s_lshl_b32 s28, s26, 8
    s_add_u32 s28, s28, {STAB}
    v_lshl_add_u32 v8, v13, 2, s28
    v_lshl_add_u32 v9, v14, 4, s28
    s_lshl_b32 s28, s27, 8
    s_add_u32 s28, s28, {STAB + 1024}
    v_lshl_add_u32 v10, v14, 4, s28
    v_lshl_add_u32 v11, v13, 2, s28
    v_mov_b32 v12, {L_FAST}
    s_cmp_eq_u32 s27, 0
    s_cbranch_scc0 A_epi1""")
    def qk_tile(bb, addr, off):
        for Pp in range(2):
            r0 = ACC0 + 16*bb + 8*Pp
            for h in range(2):
                AB = 16 + 4*(2*Pp + h)
                for i in range(2):
                    r = r0 + 4*h + 2*i
                    a(f"v_pk_mul_f32 v[{r}:{r+1}], v[{r}:{r+1}], v[{AB}:{AB+1}] op_sel_hi:[1,0]")
            for h in range(2):
                AB = 16 + 4*(2*Pp + h)
                for i in range(2):
                    r = r0 + 4*h + 2*i
                    a(f"v_pk_fma_f32 v[{r}:{r+1}], v[{32+4*bb+2*i}:{33+4*bb+2*i}], v[{AB+2}:{AB+3}], v[{r}:{r+1}] op_sel_hi:[1,0,1]")
            d = r0
            for i in range(4): a(f"v_cvt_pk_bf16_f32 v{d+i}, v{r0+2*i}, v{r0+2*i+1}")
            a(f"v_permlane16_swap_b32 v{d}, v{d+2}\nv_permlane16_swap_b32 v{d+1}, v{d+3}")
            a(f"buffer_store_dwordx4 v[{d}:{d+3}], v{addr}, s[16:19], s{40+Pp} offen offset:{off}")
    def rd_lane_stats():
        for aa in range(4):
            a(f"ds_read_b32 v{16+4*aa}, v8 offset:{64*aa}\nds_read_b32 v{18+4*aa}, v8 offset:{512+64*aa}")
    def scale_lane_stats():
        for aa in range(4): a(f"v_mul_f32 v{16+4*aa}, s34, v{16+4*aa}\nv_mul_f32 v{18+4*aa}, s34, v{18+4*aa}")
    a(f"""v_mul_u32_u24 v2, {163840 - 5*512}, v2
    v_add_u32 v2, v2, v1
    v_add_u32 v3, {163840 - 5*512}, v1
    s_add_u32 s41, s40, 2560
    s_waitcnt lgkmcnt(0)
    s_barrier""")
    rd_lane_stats()
    for bb in range(4): a(f"ds_read_b128 v[{32+4*bb}:{35+4*bb}], v10 offset:{64*bb}")
    a("ds_read_b32 v12, v12\ns_waitcnt lgkmcnt(0)")
    scale_lane_stats()
    qk_tile(0, 1, 0); qk_tile(1, 1, 1024); qk_tile(2, 2, 2048); qk_tile(3, 3, 3072)
    a("s_branch A_pub")
    a(f"""A_epi1:
    v_add_u32 v3, {163840 + 3*512}, v1
    s_add_u32 s41, s40, 2560
    s_lshl_b32 s42, s33, 2
    s_lshl_b32 s28, s22, 1
    s_add_u32 s42, s42, s28
    s_mul_i32 s42, s42, 81920
    s_mul_i32 s28, s35, 1280
    s_add_u32 s42, s42, s28
    s_add_u32 s42, s42, {VB}
    v_mul_u32_u24 v4, 320, v14
    v_lshl_add_u32 v4, v13, 4, v4      ; cols 0..15
    v_cmp_gt_u32 vcc, 4, v13
    v_add_u32 v5, 256, v4
    v_add_u32 v6, {81920 - 64}, v4
    v_cndmask_b32 v5, v6, v5, vcc      ; cols 16..31
    v_cmp_gt_u32 vcc, 8, v13
    v_add_u32 v6, {81920 + 192}, v4
    v_mov_b32 v7, 0x7fffffff
    v_cndmask_b32 v6, v7, v6, vcc      ; cols 32..39
    s_waitcnt lgkmcnt(0)
    s_barrier""")
    rd_lane_stats()
    a("ds_read_b128 v[32:35], v10")
    for bb in range(1, 4): a(f"ds_read_b32 v{34+2*bb}, v11 offset:{64*bb}")
    a("ds_read_b32 v12, v12")
    for aa in range(4):
        a(f"ds_read_b128 v[{48+4*aa}:{51+4*aa}], v9 offset:{64*aa}\nds_read_b128 v[{64+4*aa}:{67+4*aa}], v9 offset:{512+64*aa}")
    a("s_waitcnt lgkmcnt(8)")
    scale_lane_stats()
    qk_tile(0, 3, 0)
    a("s_waitcnt lgkmcnt(0)")
    for bb in range(1, 4):
        for Pp in range(2):
            r0 = ACC0 + 16*bb + 8*Pp
            for i in range(4):
                r = r0 + 2*i
                a(f"v_pk_mul_f32 v[{r}:{r+1}], v[{r}:{r+1}], v[{48+8*Pp+2*i}:{49+8*Pp+2*i}]")
            for i in range(4):
                r = r0 + 2*i
                a(f"v_pk_fma_f32 v[{r}:{r+1}], v[{64+8*Pp+2*i}:{65+8*Pp+2*i}], v[{34+2*bb}:{35+2*bb}], v[{r}:{r+1}] op_sel_hi:[1,0,1]")
            d = r0
            for i in range(4): a(f"v_cvt_pk_bf16_f32 v{d+i}, v{r0+2*i}, v{r0+2*i+1}")
            a(f"buffer_store_dwordx4 v[{d}:{d+3}], v{3+bb}, s[16:19], s42 offen offset:{1280*Pp}")
    a("A_pub:\nv_readfirstlane_b32 s3, v12")
    st(a, 3)
    setup_scalars()
    a("B_setup:")
    setup_scalars2()
    a(f"""v_mov_b32 v1, v{PXO}
    v_mov_b32 v7, v{PTOK}
    v_mov_b32 v8, v{PG}
    v_mov_b32 v9, v{PL16}
    v_mov_b32 v15, v{PROW}
    s_lshl_b32 s36, s33, 9
    s_add_u32 s36, s36, {FLG}
    s_lshl_b32 s42, s32, 4
    s_lshl_b32 s43, s20, 2
    s_add_u32 s42, s42, s43
    s_add_u32 s42, s42, s36""")
    setup_scalars3()
    a(f"""s_cmp_lt_u32 s20, 4
    s_cbranch_scc0 B_s2
    s_waitcnt vmcnt(0)
    s_mov_b64 exec, 1
    s_cmp_eq_u32 s3, 0
    s_cbranch_scc1 B_slowpub
    buffer_store_dword v{ONE}, off, s[16:19], s42
B_pubd:
    s_mov_b64 exec, -1
B_s2:""")
    st(a, 4)
    a(f"""s_cmp_eq_u32 s20, 4
    s_cbranch_scc0 B_go
    v_lshlrev_b32 v13, 3, v0
    s_mov_b32 s42, {SPIN}
B_poll:
    buffer_load_dwordx2 v[16:17], v13, s[16:19], s36 offen sc1
    s_sub_u32 s42, s42, 1
    s_cbranch_scc1 B_go
    s_waitcnt vmcnt(0)
    v_and_b32 v16, v16, v17
    v_cmp_ne_u32 vcc, 1, v16
    s_cbranch_vccnz B_poll
B_go:
    s_mov_b32 m0, s55
    s_mov_b32 s36, {SPIN}
    s_barrier""")
    st(a, 5)
    def tc(i):
        if "tcyc" in X: a(f"s_memtime s[70:71]\ns_waitcnt lgkmcnt(0)\nv_writelane_b32 v245, s70, {i}")
    tc(0)
    def rdK(t):
        b = t & 1
        return f"ds_read_b128 v[{KM[b]}:{KM[b]+3}], v{AK} offset:{((t>>2)&1)*RSLOT + (t&3)*STEP}"
    def rdV(t):
        b = (t + 1) & 1; o = ((t>>2)&1)*RSLOT + (t&3)*STEP
        return f"s_mov_b64 exec, s[44:45]\nds_read_b128 v[{V[b]}:{V[b]+3}], v{AVL} offset:{o}\nds_read_b128 v[{V[b]+4}:{V[b]+7}], v{AVL} offset:{o+640}\ns_mov_b64 exec, -1"
    def stageK(j): return f"s_add_u32 m0, s55, {(j&1)*RSLOT}\ns_add_u32 s42, s34, {j*4*2560}\nbuffer_load_dwordx4 v{AKM}, s[16:19], s42 offen lds"
    def stageV(j): return f"s_add_u32 s42, s54, {j*4*1280}\nbuffer_load_dwordx4 v9, s[16:19], s42 offen offset:1024 lds\nbuffer_load_dword v{AL4}, s[16:19], s42 offen offset:2048 lds"
    def ldKT(j, p): return f"s_add_u32 s42, s35, {(4*j + 1 + 2*p)*2560}\nbuffer_load_dwordx2 v[{KT[j&1]+2*p}:{KT[j&1]+2*p+1}], v{AKT}, s[16:19], s42 offen"
    def dmaWO(n): return f"s_add_u32 m0, s38, {7680*n}\ns_add_u32 s42, s37, {61440*n}\nbuffer_load_dwordx4 v{AWO}, s[8:11], s42 offen lds"
    def m2b(t):
        u = t - 1; kt = KT[(u>>2)&1] + 2*((u>>1)&1); ab = u & 1
        if t == 0: kt = KT[1]; ab = 0
        return f"v_mfma_f32_32x32x4_2b_bf16 v[{S[t&1]}:{S[t&1]+31}], v[{kt}:{kt+1}], v[{QT}:{QT+1}], 0 cbsz:1 abid:{ab}"
    def m16(t, q): return f"v_mfma_f32_32x32x16_bf16 v[{S[t&1]+16*q}:{S[t&1]+16*q+15}], v[{KM[t&1]}:{KM[t&1]+3}], v[{QM[q]}:{QM[q]+3}], v[{S[t&1]+16*q}:{S[t&1]+16*q+15}]"
    def pv(t, i): return f"v_smfmac_f32_32x32x32_bf16 v[{O[i>>1]}:{O[i>>1]+15}], v[{V[t&1]+4*(i&1)}:{V[t&1]+4*(i&1)+3}], v[{S[t&1]+8*i}:{S[t&1]+8*i+7}], v{IDX}"
    def ex(buf, lo, hi):
        for i in range(lo, hi): a(f"v_exp_f32 v{S[buf]+i}, v{S[buf]+i}")
    def f2read(r):
        return "\n".join(f"ds_read_b64_tr_b16 v[{F2+8*r+4*s_+2*t}:{F2+8*r+4*s_+2*t+1}], v{AF2} offset:{1024*s_+128*t}" for s_ in range(2) for t in range(2))
    WG0 = P.get("wg0", 1)
    def cn(j): return ACW if j >= WG0 else ACN
    def signal(j): return f"s_mov_b64 exec, 1\nds_add_u32 v{cn(j)}, v{ONE}\ns_mov_b64 exec, -1"
    def peek(j): return f"ds_read_b32 v14, v{cn(j)}"
    def check(j): return f"B_chk{j}:\ns_waitcnt lgkmcnt(0)\nv_cmp_gt_u32 vcc, {8*(j-WG0+1) if j >= WG0 else 4*(j+1)}, v14\ns_cbranch_vccnz B_spin{j}\nB_chkd{j}:"
    a(f"""buffer_load_dwordx2 v[{QT}:{QT+1}], v{AKT}, s[16:19], s41 offen
    buffer_load_dwordx2 v[{KT[1]}:{KT[1]+1}], v{AKT}, s[16:19], s35 offen
    buffer_load_dwordx4 v[{QM[0]}:{QM[0]+3}], v{AKM}, s[16:19], s41 offen
    buffer_load_dwordx4 v[{KM[0]}:{KM[0]+3}], v{AKM}, s[16:19], s35 offen
    buffer_load_dwordx4 v[{QM[1]}:{QM[1]+3}], v{AKM}, s[16:19], s41 offen offset:2560""")
    a(ldKT(0, 0))
    a(f"""s_mov_b64 exec, s[44:45]
    buffer_load_dwordx4 v[{V[0]}:{V[0]+3}], v{AV}, s[16:19], s25 offen
    buffer_load_dwordx4 v[{V[0]+4}:{V[0]+7}], v{AV}, s[16:19], s25 offen offset:640
    s_mov_b64 exec, -1
    s_waitcnt vmcnt(6)""")
    a(m2b(0))
    a(f"buffer_load_dwordx4 v[{KM[1]}:{KM[1]+3}], v{AKM}, s[16:19], s35 offen offset:2560")
    a(stageK(0)); a(stageV(0)); a(ldKT(0, 1))
    a("s_waitcnt vmcnt(8)")
    st(a, 6)
    a(m16(0, 0)); a(m16(0, 1))
    side = {}
    def put(t, k, txt): side.setdefault((t, k), []).append(txt)
    T0 = P.get("t0", 0); WO0 = P.get("wo0", 2); MK0 = P.get("mk0", 1)
    for t in range(32):
        j = t >> 2; it = t & 3
        if t == 0:
            put(0, 0, "s_waitcnt vmcnt(7)")
            put(0, 1, "s_waitcnt vmcnt(5)")
            put(0, 3, "s_waitcnt vmcnt(0)\n" + signal(0))
            put(0, 4, peek(0))
            put(0, 5, check(0) + "\n" + rdK(0) + "\n" + rdV(0))
            put(0, 6, stageK(1) + "\n" + stageV(1))
            put(1, 2, ldKT(1, 0) + "\n" + ldKT(1, 1))
            continue
        put(t, 0, check(j) if it == 0 else "s_waitcnt lgkmcnt(0)")
        if t < 30: put(t, 0, rdK(t))
        if t < 31: put(t, 1, rdV(t))
        if it == 0 and j < 7:
            put(t, 2, stageK(j + 1)); put(t, 3, stageV(j + 1)); put(t, 4, ldKT(j + 1, 0)); put(t, 5, ldKT(j + 1, 1))
        if it == 3 and j < 7:
            put(t, P.get("sig", 3), f"s_waitcnt vmcnt(@{j}@) lgkmcnt(0)\n" + signal(j + 1))
            if "psig" in X: put(t, P.get("sig", 3), "s_setprio 3")
            put(t, 6, peek(j + 1))
    if "kvt" in X: put(1, 3, f"buffer_load_dword v10, v{TKV}, s[16:19], 0 offen")
    if "notouch" not in X:
        put(4*T0 + 1, 3, f"buffer_load_dword v10, v{TW}, s[8:11], 0 offen")
        put(4*T0 + 5, 2, f"buffer_load_dword v10, v{TG}, s[64:67], 0 offen")
        put(4*T0 + 9, 4, f"buffer_load_dword v10, v{TD}, s[60:63], 0 offen")
    n = 0
    if "nowo" not in X:
        for j in range(WO0, 8):
            for k in range(2 if j < 7 else 13 - n):
                put(4*j + (1 if j < 7 else 0), 2 + k, dmaWO(n)); n += 1
        put(28, 5, f"""s_mul_i32 s43, s20, 60
        s_sub_u32 s43, {6400 - 104*60}, s43
        v_cmp_gt_i32 vcc, s43, v0
        s_and_b64 exec, exec, vcc
        s_cbranch_execz B_nwl
        {dmaWO(13)}
B_nwl:
        s_mov_b64 exec, -1""")
    if "mkA" not in X:
        put(4*MK0 + 1, 4, f"""s_min_u32 s42, s20, 6
    s_lshl_b32 s42, s42, 11
    s_add_u32 s42, s42, s39
    buffer_store_dwordx4 v[{MK}:{MK+3}], v9, s[16:19], s42 offen sc1
    buffer_store_dwordx4 v[{MK}:{MK+3}], v9, s[16:19], s42 offen offset:1024 sc1""")
        put(4*MK0 + 9, 5, f"v_mov_b32 v11, {L_CNT}\ns_mov_b64 exec, 1\nds_add_rtn_u32 v11, v11, v{ONE}\ns_mov_b64 exec, -1")
        put(4*MK0 + 10, 1, "v_readfirstlane_b32 s42, v11\ns_cmp_eq_u32 s42, 7\ns_cbranch_scc1 B_mark\nB_markd:")
    if "noff" not in X:
        for r in range(3):
            put(4*(4 + r) + 1, 4, f"s_cmp_lg_u32 s23, 0\ns_cbranch_scc1 B_ff{r}\nB_ffd{r}:")
            put(4*(4 + r) + 3, 4, f"s_cmp_eq_u32 s23, 2\ns_cbranch_scc1 B_f2r{r}\nB_f2d{r}:")
    put(29, 2, f"""buffer_load_dwordx4 v[{XR}:{XR+3}], v1, s[4:7], 0 offen
    buffer_load_dwordx4 v[{XR+4}:{XR+7}], v1, s[4:7], 0 offen offset:16""")
    put(29, 3, f"""buffer_load_dwordx2 v[{XR+8}:{XR+9}], v1, s[4:7], 0 offen offset:32
    buffer_load_dword v11, v{AL4}, s[12:15], 0 offen sc1""")
    put(29, 4, f"""s_add_u32 s42, s39, {B_PST}
    buffer_load_dword v10, v9, s[16:19], s42 offen sc1
    buffer_load_dwordx4 v[{WR}:{WR+3}], v{WRO}, s[48:51], 0 offen""")
    put(29, 5, f"""buffer_load_dwordx4 v[{WR+4}:{WR+7}], v{WRO}, s[48:51], 0 offen offset:16
    buffer_load_dwordx2 v[{WR+8}:{WR+9}], v{WRO}, s[48:51], 0 offen offset:32""")
    put(31, 3, f"""s_add_u32 s40, s40, s30
    s_and_b32 s42, s40, 7
    s_mul_i32 s42, s42, 1280
    s_add_u32 s42, s42, s39""")
    put(31, 6, f"s_mov_b32 s46, {hx(2.0**-90)}\ns_mov_b32 s47, {hx(2.0**90)}")
    for j in range(7):
        seq = [ln.strip() for t in range(4*j, 4*j + 4) for k in range(7) for x in side.get((t, k), []) for ln in x.split("\n")]
        seq = seq[:[i for i, ln in enumerate(seq) if f"@{j}@" in ln][0]]
        last = max(i for i, ln in enumerate(seq) if ln.startswith("buffer_load_dwordx2") and f"v{AKT}," in ln)
        n_ = sum(ln.startswith("buffer_") for ln in seq[last + 1:])
        if "vm0" in X: n_ = 0
        key = (4*j + 3, P.get("sig", 3))
        side[key] = [x.replace(f"@{j}@", str(n_)) for x in side[key]]
    def sd(t, k):
        for x in side.get((t, k), []): a(x)
    for t in range(32):
        c = t & 1
        if t & 3 == 0: tc(1 + (t >> 2))
        ex(c, 0, 2)
        if t > 0: a(pv(t - 1, 3))
        if "noprio" not in X: a(f"s_setprio {3 - (t & 3)}")
        sd(t, 0)
        ex(c, 2, 6)
        if t < 31: a(m2b(t + 1))
        sd(t, 1)
        ex(c, 6, 14)
        a(pv(t, 0)); sd(t, 2)
        ex(c, 14, 18)
        a(pv(t, 1)); sd(t, 3)
        ex(c, 18, 22)
        if t < 31: a(m16(t + 1, 0))
        sd(t, 4)
        ex(c, 22, 26)
        if t < 31: a(m16(t + 1, 1))
        sd(t, 5)
        ex(c, 26, 30)
        a(pv(t, 2)); sd(t, 6)
        ex(c, 30, 32)
    a("s_cmp_eq_u32 s30, 0\ns_waitcnt vmcnt(8)")
    a(pv(31, 3))
    tc(9)
    def cwr(o):
        a(f"""ds_write_b128 v{CW}, v[{o}:{o+3}]
        ds_write_b128 v{CW}, v[{o+4}:{o+7}] offset:1024
        ds_write_b64 v{CW3}, v[{o+8}:{o+9}] offset:2176
        ds_write_b32 v{CWL}, v{o+10} offset:2048""")
    a("s_cbranch_scc1 B_c0")
    cwr(O[0])
    for i in range(11): a(f"v_mov_b32 v{O[0]+i}, v{O[1]+i}")
    a("s_branch B_c1\nB_c0:")
    cwr(O[1])
    a("B_c1:\ns_waitcnt lgkmcnt(0)\ns_barrier")
    st(a, 7)
    if "tcyc" in X:
        tc(10)
        a("s_nop 1\nv_readlane_b32 s70, v245, 0")
        for i in range(1, 11): a(f"v_readlane_b32 s71, v245, {i}\ns_sub_u32 s71, s71, s70\ns_add_u32 s{86+i}, s86, s71")
        global STAMPOFF
        STAMPOFF = True
    Oo = O[0]
    a(f"""ds_read_b32 v26, v{CRL} offset:2048
    ds_read_b128 v[16:19], v{CR}
    ds_read_b128 v[20:23], v{CR} offset:1024
    ds_read_b64 v[24:25], v{CR3} offset:2176
    s_waitcnt lgkmcnt(3)
    v_add_f32 v13, v26, v{Oo+10}
    v_cmp_nle_f32 vcc, s46, v13
    v_cmp_nge_f32 s[46:47], s47, v13
    v_rcp_f32 v12, v13
    s_or_b64 vcc, vcc, s[46:47]
    s_waitcnt lgkmcnt(0)""")
    for i in range(5): a(f"v_pk_add_f32 v[{Oo+2*i}:{Oo+2*i+1}], v[{Oo+2*i}:{Oo+2*i+1}], v[{16+2*i}:{17+2*i}]")
    a("s_cbranch_vccnz B_fallback\nB_fin:")
    for i in range(5): a(f"v_pk_mul_f32 v[{Oo+2*i}:{Oo+2*i+1}], v[{Oo+2*i}:{Oo+2*i+1}], v[12:13] op_sel_hi:[1,0]")
    OD = 96
    for i in range(5): a(f"v_cvt_pk_bf16_f32 v{OD+i}, v{Oo+2*i}, v{Oo+2*i+1}")
    for i in range(5): a(f"v_min_u32 v{OD+i}, -2, v{OD+i}")
    a(f"""buffer_store_dwordx4 v[{OD}:{OD+3}], v9, s[16:19], s42 offen sc1
    buffer_store_dword v{OD+4}, v{AOT}, s[16:19], s42 offen offset:1024 sc1""")
    st(a, 8)
    NW = 6; WFS = [16, 36, 56, 76, 152, 172]; OF = 192; ACC = 232
    HS = 8 * BS
    a(f"""v_bfe_u32 v2, v0, 2, 2
    v_and_b32 v3, 3, v0
    v_mul_u32_u24 v3, 40, v3
    v_lshrrev_b32 v4, 1, v8
    v_mul_u32_u24 v5, 20, v4
    v_and_b32 v6, 1, v8
    v_lshl_add_u32 v5, v6, 2, v5
    s_mul_i32 s43, s30, 320
    v_add3_u32 v5, v5, v2, s43
    v_mul_u32_u24 v5, 160, v5
    v_add_u32 v12, v5, v3
    v_mul_u32_u24 v5, 40, v8
    s_add_u32 s43, s43, 16
    v_add3_u32 v5, v5, v2, s43
    v_mul_u32_u24 v5, 160, v5
    v_add_u32 v13, v5, v3""")
    def rdW(slot, s):
        for j in range(5):
            for t in range(2):
                d = WFS[slot] + 4*j + 2*t
                if s < 8: a(f"ds_read_b64_tr_b16 v[{d}:{d+1}], v12 offset:{6400*s+1280*t+8*j}")
                else: a(f"ds_read_b64_tr_b16 v[{d}:{d+1}], v13 offset:{25600*(s-8)+3200*t+8*j}")
    for s in range(NW): rdW(s, s)
    a(f"""s_lshr_b32 s42, s21, 2
    s_mul_i32 s42, s42, {BS}
    s_lshl_b32 s43, s21, 1
    s_lshr_b32 s46, s31, 1
    s_add_u32 s43, s43, s46
    s_and_b32 s43, s43, 7
    s_mul_i32 s43, s43, 1280
    s_add_u32 s42, s42, s43
    s_mul_i32 s43, s30, {16*HS}
    s_add_u32 s42, s42, s43
    s_add_u32 s42, s42, {BLK}
    s_and_b32 s43, s31, 1
    s_lshl_b32 s43, s43, 4
    v_add_u32 v5, s43, v7
    v_mul_u32_u24 v4, {HS}, v4
    v_lshl_add_u32 v4, v6, 9, v4
    v_lshl_add_u32 v2, v5, 4, v4
    v_mul_u32_u24 v4, {2*HS}, v8
    v_lshl_add_u32 v3, v5, 3, v4""")
    for i in range(20): a(f"v_mov_b32 v{ACC+i}, 0")
    a(f"""s_mov_b32 s47, {SPIN}
    s_waitcnt vmcnt(2)
C_chk:
    v_lshrrev_b32 v4, 16, v11
    v_add_u32_dpp v4, v4, v4 quad_perm:[1,0,3,2] row_mask:0xf bank_mask:0xf
    v_add_u32_dpp v4, v4, v4 quad_perm:[2,3,0,1] row_mask:0xf bank_mask:0xf
    v_add_u32_dpp v4, v4, v4 row_half_mirror row_mask:0xf bank_mask:0xf
    v_add_u32_dpp v4, v4, v4 row_mirror row_mask:0xf bank_mask:0xf
    v_readlane_b32 s43, v4, 0
    v_readlane_b32 s46, v4, 16
    s_add_u32 s43, s43, s46
    v_readlane_b32 s46, v4, 32
    s_add_u32 s43, s43, s46
    v_readlane_b32 s46, v4, 48
    s_add_u32 s43, s43, s46
    s_cmp_lt_u32 s43, 256
    s_cbranch_scc1 C_again
C_chkd:
    s_mul_i32 s43, s31, {STEP}
    s_add_u32 s43, s43, {L_RING}
    v_add_u32 v10, s43, v9
    s_lshr_b32 s43, s31, 1
    s_mul_i32 s43, s43, {2*RSLOT}
    s_and_b32 s46, s31, 1
    s_mul_i32 s46, s46, 3072
    s_add_u32 s43, s43, s46
    s_add_u32 s43, s43, {L_RING + RSLOT}
    v_add_u32 v14, s43, v9
    s_mov_b32 s46, 0
    s_mov_b32 s47, {SPIN}
    s_waitcnt lgkmcnt(0)""")
    st(a, 9)
    for s in range(10):
        a(f"C_RL{s}:")
        if s < 8:
            a(f"s_add_u32 s43, s42, {2*s*HS}\nbuffer_load_dwordx4 v[{OF+4*s}:{OF+4*s+3}], v2, s[16:19], s43 offen sc1")
        else:
            for t in range(2):
                a(f"s_add_u32 s43, s42, {(8*(s-8)+t)*HS}\nbuffer_load_dwordx2 v[{OF+4*s+2*t}:{OF+4*s+2*t+1}], v3, s[16:19], s43 offen offset:1024 sc1")
    a("s_cmp_lg_u32 s46, 0\ns_cbranch_scc1 C_back")
    for s in range(10):
        nO = 12 - (s + 1 if s < 8 else 8 + 2*(s - 7))
        o = OF + 4*s
        a(f"""C_CK{s}:
        s_waitcnt vmcnt({nO})
        v_max3_u32 v4, v{o}, v{o+1}, v{o+2}
        v_max_u32 v4, v4, v{o+3}
        v_cmp_eq_u32 vcc, -1, v4
        s_cbranch_vccnz C_RT{s}
C_GO{s}:""")
        if s == NW: a("s_waitcnt lgkmcnt(0)")
        slot = s % NW
        for j in range(5):
            a(f"v_mfma_f32_16x16x32_bf16 v[{ACC+4*j}:{ACC+4*j+3}], v[{WFS[slot]+4*j}:{WFS[slot]+4*j+3}], v[{o}:{o+3}], v[{ACC+4*j}:{ACC+4*j+3}]")
        if s + NW < 10: rdW(s, s + NW)
    st(a, 10)
    a(f"""s_cmp_eq_u32 s30, 0
    s_cbranch_scc1 C_main""")
    for j in range(5): a(f"ds_write_b128 v{10 if j < 2 else 14}, v[{ACC+4*j}:{ACC+4*j+3}] offset:{1024*(j if j < 2 else j-2)}")
    a("s_waitcnt lgkmcnt(0)\ns_barrier\ns_branch D_helper")
    a("C_main:\ns_mov_b32 s46, 0xffff0000")
    WU = 40
    a("v_mov_b32 v23, 0")
    for i in range(10):
        a(f"""v_lshlrev_b32 v{WU+2*i}, 16, v{WR+i}
        v_and_b32 v{WU+2*i+1}, s46, v{WR+i}
        v_lshlrev_b32 v60, 16, v{XR+i}
        v_and_b32 v61, s46, v{XR+i}
        v_add_f32 v23, v23, v{WU+2*i}
        v_add_f32 v23, v23, v{WU+2*i+1}
        v_add_f32 v{ACC+2*i}, v{ACC+2*i}, v60
        v_add_f32 v{ACC+2*i+1}, v{ACC+2*i+1}, v61""")
    a("v_mov_b32 v20, 0\nv_mov_b32 v21, 0\nv_mov_b32 v22, 0\ns_barrier")
    for j in range(5): a(f"ds_read_b128 v[{64+4*j}:{67+4*j}], v{10 if j < 2 else 14} offset:{1024*(j if j < 2 else j-2)}")
    HP = XR
    for i in range(10):
        if i % 2 == 0: a(f"s_waitcnt lgkmcnt({4 - i//2})")
        r = ACC + 2*i
        a(f"""v_pk_add_f32 v[{r}:{r+1}], v[{r}:{r+1}], v[{64+2*i}:{65+2*i}]
        v_cvt_pk_bf16_f32 v{HP+i}, v{r}, v{r+1}
        v_min_u32 v{HP+i}, -2, v{HP+i}
        v_lshlrev_b32 v{r}, 16, v{HP+i}
        v_and_b32 v{r+1}, s46, v{HP+i}
        v_add_f32 v20, v20, v{r}
        v_fmac_f32 v21, v{r}, v{r}
        v_fmac_f32 v22, v{r}, v{WU+2*i}
        v_add_f32 v20, v20, v{r+1}
        v_fmac_f32 v21, v{r+1}, v{r+1}
        v_fmac_f32 v22, v{r+1}, v{WU+2*i+1}""")
    a(f"""v_lshlrev_b32 v2, 4, v7
    v_lshl_add_u32 v3, v8, 2, v2
    v_permlane32_swap_b32 v20, v22
    v_permlane32_swap_b32 v21, v23
    v_add_f32 v20, v20, v22
    v_add_f32 v21, v21, v23
    s_lshl_b32 s42, s31, 8
    s_add_u32 s43, s42, s39
    v_permlane16_swap_b32 v20, v21
    v_add_f32 v20, v20, v21
    s_add_u32 s43, s43, {B_PST}
    v_min_u32 v20, -2, v20
    s_cmp_eq_u32 s3, 0
    s_cbranch_scc1 C_slowst
    buffer_store_dword v20, v3, s[16:19], s43 offen
C_std:""")
    st(a, 11)
    a(f"""s_mul_i32 s43, s21, {8*BS}
    s_add_u32 s43, s43, s42
    s_add_u32 s43, s43, {BLK + B_PST}
    s_add_u32 s41, s43, {BS}
    v_mul_u32_u24 v4, {2*BS}, v8
    v_add_u32 v4, v4, v2
    s_mov_b32 s47, {SPIN}
C_p1:
    buffer_load_dwordx4 v[24:27], v4, s[16:19], s43 offen sc1
    buffer_load_dwordx4 v[28:31], v4, s[16:19], s41 offen sc1
    s_sub_u32 s47, s47, 1
    s_cbranch_scc1 C_p1d
    s_waitcnt vmcnt(0)
    v_max3_u32 v5, v24, v25, v26
    v_max3_u32 v5, v5, v27, v28
    v_max3_u32 v5, v5, v29, v30
    v_max_u32 v5, v5, v31
    v_cmp_eq_u32 vcc, -1, v5
    s_cbranch_vccnz C_p1
C_p1d:
    s_waitcnt vmcnt(0)""")
    st(a, 12)
    a("v_pk_add_f32 v[24:25], v[24:25], v[28:29]\nv_pk_add_f32 v[26:27], v[26:27], v[30:31]")
    for sw in ("v_permlane16_swap_b32", "v_permlane32_swap_b32"):
        for i in range(4): a(f"v_mov_b32 v{28+i}, v{24+i}")
        for i in range(4): a(f"{sw} v{28+i}, v{24+i}")
        a("v_pk_add_f32 v[24:25], v[24:25], v[28:29]\nv_pk_add_f32 v[26:27], v[26:27], v[30:31]")
    a(f"""s_mov_b32 s41, {hx(1.0/640)}
    v_mul_f32 v24, s41, v24            ; mean
    v_mul_f32 v25, s41, v25
    v_fma_f32 v25, -v24, v24, v25
    v_max_f32 v25, 0, v25
    v_add_f32 v25, {hx(1e-5)}, v25
    v_rsq_f32 v25, v25                 ; rstd
    v_fma_f32 v26, -v24, v27, v26
    s_mov_b32 s41, 0xfffff800
    v_mul_f32 v26, v26, v25
    v_sub_u32 v5, 2047, v15
    v_ashrrev_i32 v28, 31, v26
    v_or_b32 v28, 0x80000000, v28
    v_xor_b32 v28, v28, v26
    v_min_u32 v28, 0xfffff7ff, v28
    v_and_or_b32 v28, v28, s41, v5     ; key
    v_mov_b32 v30, v28
    v_mov_b32 v31, 0""")
    for mod in ("quad_perm:[1,0,3,2]", "quad_perm:[2,3,0,1]", "row_half_mirror", "row_mirror"):
        a(f"""v_mov_b32_dpp v5, v30 {mod} row_mask:0xf bank_mask:0xf
        v_max_u32_dpp v31, v31, v31 {mod} row_mask:0xf bank_mask:0xf
        v_med3_u32 v31, v30, v5, v31
        v_max_u32 v30, v30, v5""")
    a(f"""s_cmp_lg_u32 s22, s31
    s_cbranch_scc1 C_nokey
    s_add_u32 s43, s39, {B_KEY}
    s_mov_b64 exec, 1
    buffer_store_dwordx2 v[30:31], off, s[16:19], s43 sc1
    s_mov_b64 exec, -1
C_nokey:
    v_mul_f32 v26, {hx(-L2E)}, v26
    v_cmp_eq_u32 vcc, v28, v31
    v_exp_f32 v26, v26
    v_cmp_eq_u32 s[34:35], v28, v30
    v_cndmask_b32 v5, 0, 1, vcc
    v_add_f32 v26, 1.0, v26
    s_or_b64 s[34:35], s[34:35], vcc
    v_rcp_f32 v26, v26                 ; sigmoid(score)
    v_lshlrev_b32 v5, 8, v5
    v_lshl_add_u32 v6, v8, 3, v5
    v_lshl_add_u32 v4, v8, 4, v5
    v_min_u32 v32, -2, v24
    v_min_u32 v33, -2, v25
    v_min_u32 v34, -2, v26
    v_mov_b32 v35, 0
    s_lshl_b32 s43, s31, 9
    s_add_u32 s43, s43, s39
    s_add_u32 s43, s43, {B_HC}
    s_mov_b64 exec, s[34:35]
    buffer_store_dwordx4 v[{HP}:{HP+3}], v4, s[16:19], s43 offen sc1
    buffer_store_dwordx4 v[{HP+4}:{HP+7}], v4, s[16:19], s43 offen offset:64 sc1
    buffer_store_dwordx2 v[{HP+8}:{HP+9}], v6, s[16:19], s43 offen offset:128 sc1
    s_and_b32 exec_lo, exec_lo, 0xffff
    s_mov_b32 exec_hi, 0
    buffer_store_dwordx4 v[32:35], v5, s[16:19], s43 offen offset:160 sc1
    s_mov_b64 exec, -1
    s_barrier""")
    st(a, 13)
    OP = 64
    a("v_mul_f32 v36, -v24, v25\nv_add_f32 v38, 1.0, v25")
    for i in range(10):
        r = ACC + 2*i
        a(f"v_pk_fma_f32 v[{r}:{r+1}], v[{r}:{r+1}], v[38:39], v[36:37] op_sel_hi:[1,0,0]")
    for i in range(10): a(f"v_cvt_pk_bf16_f32 v{OP+i}, v{ACC+2*i}, v{ACC+2*i+1}")
    def outst():
        a(f"""buffer_store_dwordx4 v[{OP}:{OP+3}], v1, s[56:59], 0 offen
        buffer_store_dwordx4 v[{OP+4}:{OP+7}], v1, s[56:59], 0 offen offset:16
        buffer_store_dwordx2 v[{OP+8}:{OP+9}], v1, s[56:59], 0 offen offset:32""")
    a("s_andn2_b64 exec, exec, s[34:35]")
    outst()
    a(f"""s_mov_b64 exec, -1
    v_mov_b32 v4, {L_IDX}
    s_barrier
    ds_read_b64 v[16:17], v4
    s_waitcnt lgkmcnt(0)
    v_cmp_ne_u32 vcc, v16, v15
    v_cmp_ne_u32 s[36:37], v17, v15
    s_and_b64 s[34:35], s[34:35], vcc
    s_and_b64 exec, s[34:35], s[36:37]
    s_cbranch_execz C_noc""")
    outst()
    a("C_noc:\ns_mov_b64 exec, -1\ns_branch D_ffn2")
    AF = 16; BF = 96; CS = 176; AC = 180; MT = 184
    a(f"""D_helper:
    s_cmp_eq_u32 s31, 0
    s_cbranch_scc1 D_poller
    s_sub_u32 s42, s32, 24
    s_cmp_ge_u32 s42, 5
    s_cbranch_scc1 L_done
    v_mov_b32 v4, {L_IDX}
    s_barrier
    s_barrier
    ds_read_b64 v[16:17], v4
    s_branch D_ffn2
D_poller:
    s_cmp_ge_u32 s32, 24
    s_cbranch_scc1 D_poll
    v_bfe_u32 v2, v0, 2, 2
    v_mul_u32_u24 v3, 20, v8
    v_add_u32 v2, v2, v3
    v_lshlrev_b32 v2, 4, v2
    v_and_b32 v3, 1, v0
    v_lshl_add_u32 v2, v3, 3, v2
    v_bfe_u32 v3, v0, 1, 1
    v_mul_u32_u24 v3, {UPO}, v3
    s_mov_b32 s42, {L_FF}
    v_add3_u32 v2, v2, v3, s42""")
    for s in range(20):
        for t in range(2):
            row = (80*(s >> 1) + 8*(s & 1) + 4*t) if s < 16 else (80*(2*(s - 16) + t) + 16)
            a(f"ds_read_b64_tr_b16 v[{AF+4*s+2*t}:{AF+4*s+2*t+1}], v2 offset:{16*row}")
    for i in range(4): a(f"v_mov_b32 v{BF+i}, 0x3f803f80\nv_mov_b32 v{CS+i}, 0")
    a("s_waitcnt lgkmcnt(0)")
    for s in range(20):
        a(f"v_mfma_f32_16x16x32_bf16 v[{CS}:{CS+3}], v[{AF+4*s}:{AF+4*s+3}], v[{BF}:{BF+3}], v[{CS}:{CS+3}]")
    a(f"""D_poll:
    v_lshrrev_b32 v2, 2, v0
    v_and_b32 v3, 3, v0
    v_lshl_add_u32 v2, v2, 3, v3
    v_mul_u32_u24 v2, {BS}, v2
    s_mov_b32 s42, {BLK + B_KEY}
    s_mov_b32 s43, {BLK + B_KEY + 128*BS}
    s_mov_b32 s47, {SPIN}
    s_barrier
D_p2:
    buffer_load_dwordx2 v[188:189], v2, s[16:19], s42 offen sc1
    buffer_load_dwordx2 v[190:191], v2, s[16:19], s43 offen sc1
    s_sub_u32 s47, s47, 1
    s_cbranch_scc1 D_p2d
    s_waitcnt vmcnt(0)
    v_max3_u32 v3, v188, v189, v190
    v_max_u32 v3, v3, v191
    v_cmp_eq_u32 vcc, -1, v3
    s_cbranch_vccnz D_p2
D_p2d:
    s_waitcnt vmcnt(0)""")
    st(a, 11)
    a("v_max_u32 v13, v189, v191\nv_med3_u32 v13, v188, v190, v13\nv_max_u32 v12, v188, v190")
    for mod in ("quad_perm:[1,0,3,2]", "quad_perm:[2,3,0,1]", "row_half_mirror", "row_mirror"):
        a(f"""v_mov_b32_dpp v5, v12 {mod} row_mask:0xf bank_mask:0xf
        v_max_u32_dpp v13, v13, v13 {mod} row_mask:0xf bank_mask:0xf
        v_med3_u32 v13, v12, v5, v13
        v_max_u32 v12, v12, v5""")
    for sw in ("v_permlane16_swap_b32", "v_permlane32_swap_b32"):
        a(f"""v_mov_b32 v5, v12
        v_mov_b32 v6, v13
        {sw} v5, v12
        {sw} v6, v13
        v_max_u32 v13, v13, v6
        v_med3_u32 v13, v12, v5, v13
        v_max_u32 v12, v12, v5""")
    def hc_base(d, i0, i1, t0, t1):
        a(f"""v_xor_b32 v{t0}, v{i0}, v{i1}
        v_and_b32 v{t1}, 1, v0
        v_cmp_gt_u32 vcc, 16, v{t0}
        v_cmp_eq_u32 s[36:37], 1, v{t1}
        s_and_b64 vcc, vcc, s[36:37]
        v_cndmask_b32 v{t1}, v{i0}, v{i1}, s[36:37]
        v_cndmask_b32 v{t0}, 0, 1, vcc
        v_lshrrev_b32 v{d}, 6, v{t1}
        v_mul_u32_u24 v{d}, {8*BS}, v{d}
        v_lshl_add_u32 v{d}, v{t0}, 8, v{d}
        v_bfe_u32 v{t0}, v{t1}, 4, 2
        v_lshl_add_u32 v{d}, v{t0}, 9, v{d}""")
    a(f"""v_and_b32 v12, 0x7ff, v12
    v_and_b32 v13, 0x7ff, v13
    v_sub_u32 v12, 2047, v12
    v_sub_u32 v13, 2047, v13
    v_mov_b32 v4, {L_IDX}
    ds_write_b64 v4, v[12:13]
    s_cmp_lt_u32 s32, 24
    s_cbranch_scc1 D_ffn1
    v_mov_b32 v16, v12
    v_mov_b32 v17, v13
    s_waitcnt lgkmcnt(0)
    s_barrier
    s_branch D_ffn2
D_ffn1:""")
    hc_base(2, 12, 13, 5, 6)
    a(f"""v_lshl_add_u32 v3, v8, 3, v2
    v_lshl_add_u32 v4, v8, 4, v2
    s_mov_b32 s36, 0x00030003
    s_mov_b32 s37, 0x00030003
    s_mov_b32 s47, {SPIN}
    s_mov_b32 s46, 0
D_p3:
    s_mov_b64 exec, s[36:37]""")
    for cg in range(8):
        a(f"""s_mov_b32 s42, {BLK + B_HC + cg*BS}
        buffer_load_dwordx4 v[{BF+8*cg}:{BF+8*cg+3}], v4, s[16:19], s42 offen sc1
        buffer_load_dwordx4 v[{BF+8*cg+4}:{BF+8*cg+7}], v4, s[16:19], s42 offen offset:64 sc1
        buffer_load_dwordx2 v[{BF+64+2*cg}:{BF+64+2*cg+1}], v3, s[16:19], s42 offen offset:128 sc1""")
    a(f"""buffer_load_dwordx4 v[{MT}:{MT+3}], v2, s[16:19], s42 offen offset:160 sc1
    s_mov_b64 exec, -1
    v_mov_b32 v5, 0
    s_cmp_lg_u32 s46, 0
    s_cbranch_scc1 D_p3b
    s_mov_b32 s46, 1
    s_waitcnt lgkmcnt(0)
    s_barrier
D_p3b:""")
    order = []
    for cg in range(8):
        order += [2*cg, 2*cg + 1]
        if cg & 1: order.append(16 + (cg >> 1))
    for n, s in enumerate(order):
        done = (3*(s >> 1) + 1 + (s & 1)) if s < 16 else 3*(2*(s - 16) + 2)
        a(f"s_waitcnt vmcnt({25 - done})")
        a(f"v_mfma_f32_16x16x32_bf16 v[{AC}:{AC+3}], v[{AF+4*s}:{AF+4*s+3}], v[{BF+4*s}:{BF+4*s+3}], {'0' if n == 0 else f'v[{AC}:{AC+3}]'}")
        a(f"v_max3_u32 v5, v5, v{BF+4*s}, v{BF+4*s+1}\nv_max3_u32 v5, v5, v{BF+4*s+2}, v{BF+4*s+3}")
    a(f"""s_waitcnt vmcnt(0)
    v_max3_u32 v5, v5, v{MT}, v{MT+1}
    s_sub_u32 s47, s47, 1
    s_cbranch_scc1 D_p3d
    v_cmp_eq_u32 vcc, -1, v5
    s_and_b64 vcc, vcc, s[36:37]
    s_cbranch_scc1 D_p3
D_p3d:""")
    st(a, 12)
    a(f"v_lshlrev_b32 v2, 4, v7\nv_lshl_add_u32 v2, v8, 3, v2\ns_add_u32 s42, s39, {B_ACT}")
    for i in range(4): a(f"v_fma_f32 v{AC+i}, -v{MT}, v{CS+i}, v{AC+i}")
    for i in range(4): a(f"v_mul_f32 v{AC+i}, v{AC+i}, v{MT+1}")
    for i in range(4): a(f"v_mov_b32 v{CS+i}, v{AC+i}")
    for i in range(4): a(f"v_permlane32_swap_b32 v{CS+i}, v{AC+i}")
    for i in range(4): a(f"v_mul_f32 v{188+i}, {hx(-L2E)}, v{CS+i}")
    for i in range(4): a(f"v_exp_f32 v{188+i}, v{188+i}")
    for i in range(4): a(f"v_mul_f32 v{AC+i}, v{AC+i}, v{CS+i}")
    for i in range(4): a(f"v_add_f32 v{188+i}, 1.0, v{188+i}")
    for i in range(4): a(f"v_rcp_f32 v{188+i}, v{188+i}")
    for i in range(4): a(f"v_mul_f32 v{AC+i}, v{AC+i}, v{188+i}")
    a(f"""v_cvt_pk_bf16_f32 v{AC}, v{AC}, v{AC+1}
    v_cvt_pk_bf16_f32 v{AC+1}, v{AC+2}, v{AC+3}
    v_min_u32 v{AC}, -2, v{AC}
    v_min_u32 v{AC+1}, -2, v{AC+1}
    s_mov_b64 exec, 0x00030003
    buffer_store_dwordx2 v[{AC}:{AC+1}], v2, s[16:19], s42 offen sc1
    s_branch L_done""")
    B2 = 88; Y = 112
    a(f"""D_ffn2:
    s_sub_u32 s42, s32, 24
    s_cmp_ge_u32 s42, 5
    s_cbranch_scc1 L_done
    s_mul_i32 s43, s33, 5
    s_add_u32 s41, s42, s43
    s_waitcnt lgkmcnt(0)""")
    hc_base(12, 16, 17, 5, 13)
    a(f"""s_lshl_b32 s42, s41, 2
    v_add_u32 v2, s42, v8
    v_mul_u32_u24 v3, 205, v2
    v_lshrrev_b32 v3, 10, v3
    v_mul_u32_u24 v4, 5, v3
    v_sub_u32 v4, v2, v4
    v_lshrrev_b32 v5, 2, v3
    v_mul_u32_u24 v5, {BS}, v5
    v_add_u32 v12, v12, v5
    v_and_b32 v3, 3, v3
    v_lshrrev_b32 v5, 1, v4
    v_lshlrev_b32 v5, 6, v5
    v_and_b32 v6, 1, v4
    v_lshl_add_u32 v5, v6, 3, v5
    v_cmp_eq_u32 vcc, 4, v4
    v_lshlrev_b32 v6, 4, v3
    v_lshlrev_b32 v3, 3, v3
    v_cndmask_b32 v3, v6, v3, vcc
    v_add3_u32 v14, v12, v5, v3
    v_mul_u32_u24 v13, 1280, v13
    v_lshl_add_u32 v13, v2, 3, v13
    v_mul_u32_u24 v2, {8*BS}, v8
    v_lshl_add_u32 v2, v7, 4, v2
    s_mul_i32 s42, s20, {32*BS}
    s_add_u32 s42, s42, {BLK + B_ACT}
    s_mov_b32 s40, {BLK + B_HC}
    s_mov_b32 s36, 0x00030003
    s_mov_b32 s37, 0x00030003
    s_mov_b32 s47, {SPIN}
    s_mov_b64 exec, s[36:37]
D_p5:
    buffer_load_dwordx2 v[76:77], v14, s[16:19], s40 offen sc1
    buffer_load_dwordx4 v[80:83], v12, s[16:19], s40 offen offset:160 sc1
    s_sub_u32 s47, s47, 1
    s_cbranch_scc1 D_p5d
    s_waitcnt vmcnt(0)
    v_max3_u32 v5, v76, v77, v80
    v_max3_u32 v5, v5, v81, v82
    v_cmp_eq_u32 vcc, -1, v5
    s_cbranch_vccnz D_p5
D_p5d:
    s_waitcnt vmcnt(0)
    s_mov_b32 s46, 0xffff0000
    v_mul_f32 v80, -v80, v81
    v_add_f32 v81, 1.0, v81
    v_lshlrev_b32 v84, 16, v76
    v_and_b32 v85, s46, v76
    v_lshlrev_b32 v86, 16, v77
    v_and_b32 v87, s46, v77""")
    for i in range(4): a(f"v_fma_f32 v{84+i}, v{84+i}, v81, v80")
    a(f"s_mov_b32 s47, {SPIN}\nD_p4:")
    for s in range(6):
        a(f"s_add_u32 s43, s42, {s*BS}\nbuffer_load_dwordx4 v[{B2+4*s}:{B2+4*s+3}], v2, s[16:19], s43 offen sc1")
    a(f"""s_sub_u32 s47, s47, 1
    s_cbranch_scc1 D_p4d
    s_waitcnt vmcnt(0)
    v_max_u32 v5, v{B2}, v{B2+1}""")
    for i in range(1, 12): a(f"v_max3_u32 v5, v5, v{B2+2*i}, v{B2+2*i+1}")
    a(f"""v_cmp_eq_u32 vcc, -1, v5
    s_cbranch_vccnz D_p4
D_p4d:
    s_waitcnt vmcnt(0)
    s_mov_b64 exec, -1""")
    st(a, 14)
    for s in range(6):
        a(f"v_mfma_f32_16x16x32_bf16 v[{Y}:{Y+3}], v[{F2+4*s}:{F2+4*s+3}], v[{B2+4*s}:{B2+4*s+3}], {'0' if s == 0 else f'v[{Y}:{Y+3}]'}")
    a(f"""s_lshl_b32 s42, s20, 10
    v_add_u32 v4, s42, v9
    ds_write_b128 v4, v[{Y}:{Y+3}]
    s_waitcnt lgkmcnt(0)
    s_barrier
    s_cmp_lg_u32 s20, 0
    s_cbranch_scc1 L_done""")
    for w in range(1, 8): a(f"ds_read_b128 v[{20+4*w}:{23+4*w}], v4 offset:{1024*w}")
    for w in range(1, 8):
        a(f"s_waitcnt lgkmcnt({7-w})\nv_pk_add_f32 v[{Y}:{Y+1}], v[{Y}:{Y+1}], v[{20+4*w}:{21+4*w}]\nv_pk_add_f32 v[{Y+2}:{Y+3}], v[{Y+2}:{Y+3}], v[{22+4*w}:{23+4*w}]")
    for i in range(4): a(f"v_fma_f32 v{84+i}, v{Y+i}, v82, v{84+i}")
    a(f"""v_cvt_pk_bf16_f32 v84, v84, v85
    v_cvt_pk_bf16_f32 v85, v86, v87
    s_mov_b64 exec, s[36:37]
    buffer_store_dwordx2 v[84:85], v13, s[56:59], 0 offen
L_done:""")
    st_flush(a)
    a("L_exit:\ns_endpgm")
    for s in range(10):
        a(f"""C_RT{s}:
        s_mov_b32 s46, {s}
        s_sub_u32 s47, s47, 1
        s_cbranch_scc0 C_RL{s}
        s_mov_b32 s47, 0
        s_branch C_GO{s}""")
    a("C_back:")
    for s in range(1, 9): a(f"s_cmp_eq_u32 s46, {s}\ns_cbranch_scc1 C_CK{s}")
    a("s_branch C_CK9")
    for j in range(8):
        a(f"""B_spin{j}:
        s_sub_u32 s36, s36, 1
        s_cbranch_scc1 B_spun{j}
        s_sleep {P.get('slp', 1)}
        {peek(j)}
        s_branch B_chk{j}
B_spun{j}:
        s_mov_b32 s36, 0
        s_branch B_chkd{j}""")
    if "noff" not in X:
        for r in range(3):
            a(f"""B_ff{r}:
            s_cmp_eq_u32 s23, 2
            s_cbranch_scc1 B_ffb{r}""")
            if r == 2: a(f"s_cmp_ge_u32 s31, 2\ns_cbranch_scc1 B_ffd{r}")
            a(f"""s_add_u32 m0, s47, {4096*r}
            s_mov_b32 s42, {4*64*3072*r}
            buffer_load_dwordx4 v{FFV}, s[64:67], s42 offen lds
            s_branch B_ffd{r}
B_ffb{r}:
            s_mov_b32 m0, s47
            s_mov_b32 s42, {64*1280*r}
            buffer_load_dwordx4 v{FFV}, s[60:63], s42 offen lds
            s_mov_b32 s42, {64*1280*r + 32*1280 - 1024}
            buffer_load_dwordx4 v{FFV}, s[60:63], s42 offen offset:1024 lds
            s_branch B_ffd{r}
B_f2r{r}:
            s_waitcnt vmcnt(0)
            {f2read(r)}
            s_branch B_f2d{r}""")
    if "mkA" not in X: a(f"""B_mark:
    s_getreg_b32 s42, hwreg(HW_REG_XCC_ID, 0, 3)
    s_lshl_b32 s43, s33, 3
    s_add_u32 s42, s42, s43
    s_lshl_b32 s42, s42, 2
    v_mov_b32 v11, 0x10000
    s_mov_b64 exec, 1
    buffer_atomic_add v11, off, s[12:15], s42 sc1
    s_mov_b64 exec, -1
    s_branch B_markd""")
    a(f"""C_again:
    s_sub_u32 s47, s47, 1
    s_cbranch_scc1 C_chkd
    v_lshlrev_b32 v4, 2, v0
    buffer_load_dword v11, v4, s[12:15], 0 offen sc1
    s_waitcnt vmcnt(0)
    s_branch C_chk
B_slowpub:
    buffer_wbl2 sc1
    s_waitcnt vmcnt(0)
    buffer_store_dword v{ONE}, off, s[16:19], s42 sc1
    s_branch B_pubd
C_slowst:
    buffer_store_dword v20, v3, s[16:19], s43 offen sc1
    s_branch C_std""")
    MX = 14
    def fm2b(): return f"v_mfma_f32_32x32x4_2b_bf16 v[{S[0]}:{S[0]+31}], v[{KT[0]}:{KT[0]+1}], v[{QT}:{QT+1}], 0"
    def fm16(t): return f"v_mfma_f32_32x32x16_bf16 v[{S[0]+16*t}:{S[0]+16*t+15}], v[{KM[t]}:{KM[t]+3}], v[{QM[0]}:{QM[0]+3}], v[{S[0]+16*t}:{S[0]+16*t+15}]"
    def fldK(): return f"""buffer_load_dwordx2 v[{KT[0]}:{KT[0]+1}], v{AKT}, s[16:19], s47 offen
    buffer_load_dwordx4 v[{KM[0]}:{KM[0]+3}], v{AKM}, s[16:19], s47 offen
    buffer_load_dwordx4 v[{KM[1]}:{KM[1]+3}], v{AKM}, s[16:19], s47 offen offset:2560"""
    a(f"""B_fallback:
    s_mul_i32 s41, s40, 2560
    s_add_u32 s41, s41, s27
    v_and_b32 v12, 31, v0
    v_lshlrev_b32 v12, 4, v12
    s_lshl_b32 s43, s26, 3
    v_add_u32 v12, s43, v12
    buffer_load_dwordx2 v[{QT}:{QT+1}], v12, s[16:19], s41 offen offset:1024
    buffer_load_dwordx4 v[{QM[0]}:{QM[0]+3}], v{AKM}, s[16:19], s41 offen
    v_mov_b32 v{MX}, 0xff800000
    s_mov_b32 s46, 0
    s_mov_b32 s47, s28
B_fb_max:""")
    a(fldK()); a("s_waitcnt vmcnt(0)")
    a(fm2b()); a(fm16(0)); a(fm16(1))
    for i in range(16): a(f"v_max3_f32 v{MX}, v{MX}, v{S[0]+2*i}, v{S[0]+2*i+1}")
    a(f"""s_add_u32 s47, s47, 5120
    s_add_u32 s46, s46, 1
    s_cmp_lt_u32 s46, 32
    s_cbranch_scc1 B_fb_max
    v_mov_b32 v12, v{MX}
    v_permlane32_swap_b32 v12, v{MX}
    v_max_f32 v{MX}, v12, v{MX}""")
    for i in range(16): a(f"v_mov_b32 v{Oo+i}, 0")
    a("s_mov_b32 s46, 0\ns_mov_b32 s47, s28\ns_mov_b32 s43, s29\nB_fb_pv:")
    a(fldK()); a("s_mov_b64 exec, s[44:45]")
    for i in range(4): a(f"buffer_load_dwordx4 v[{V[0]+4*i}:{V[0]+4*i+3}], v{AV}, s[16:19], s43 offen offset:{640*i}")
    a("s_mov_b64 exec, -1\ns_waitcnt vmcnt(0)")
    a(fm2b()); a(fm16(0)); a(fm16(1))
    for i in range(32): a(f"v_sub_f32 v{S[0]+i}, v{S[0]+i}, v{MX}")
    ex(0, 0, 32)
    for i in range(4): a(f"v_smfmac_f32_32x32x32_bf16 v[{Oo}:{Oo+15}], v[{V[0]+4*i}:{V[0]+4*i+3}], v[{S[0]+8*i}:{S[0]+8*i+7}], v{IDX}")
    a(f"""s_add_u32 s47, s47, 5120
    s_add_u32 s43, s43, 2560
    s_add_u32 s46, s46, 1
    s_cmp_lt_u32 s46, 32
    s_cbranch_scc1 B_fb_pv
    s_nop 7
    v_rcp_f32 v12, v{Oo+10}
    s_nop 0
    s_branch B_fin
L_end:
    s_endpgm""")
    return a.lines, LDS

def emit(path, verbose=True):
    lines, lds = kernel()
    lines = fix_hazards(lines, verbose, "k")
    hdr = open(f"cdna_kernels/{NAME}.s.ref").read().split("; Override launch")[0]
    K = NAME + "_kernel"
    out = hdr + f"; @launch grid=(256,1,1) block=(512,1,1) lds={lds}\n"
    out += f'.amdgcn_target "amdgcn-amd-amdhsa--gfx950"\n.text\n.globl {K}\n.p2align 8\n.type {K},@function\n{K}:\n' + "\n".join(lines) + "\n"
    out += f""".section .rodata,"a"
.p2align 6
.amdhsa_kernel {K}
  .amdhsa_next_free_vgpr 256
  .amdhsa_next_free_sgpr 102
  .amdhsa_accum_offset 256
  .amdhsa_group_segment_fixed_size 0
  .amdhsa_kernarg_size 88
  .amdhsa_user_sgpr_count 2
  .amdhsa_user_sgpr_kernarg_segment_ptr 1
  .amdhsa_system_sgpr_workgroup_id_x 1
.end_amdhsa_kernel
"""
    open(path, "w").write(out)

if __name__ == "__main__":
    emit([x for x in sys.argv[1:] if not x.startswith("--")][0])
```
